```python
import torch

def _softmax(x, axis=-1):
    return torch.softmax(x, dim=axis)
def _gelu(x):
    return torch.nn.functional.gelu(x, approximate="tanh")
def _silu(x):
    return torch.nn.functional.silu(x)
def _sigmoid(x):
    return torch.sigmoid(x)
def _layernorm(x, axis=-1, eps=1e-5):
    m = x.mean(dim=axis, keepdim=True)
    v = x.var(dim=axis, keepdim=True, unbiased=False)
    return (x - m) / torch.sqrt(v + eps)
def _scatter_add(tgt, idx, src, axis=0):
    return tgt.clone().index_add_(axis, idx, src)
def _segment_sum(src, seg, n):
    out = torch.zeros((n,) + src.shape[1:], dtype=src.dtype)
    return out.index_add_(0, seg, src)
def _pad(x, pw):
    flat = tuple(v for pair in reversed(pw) for v in pair)
    return torch.nn.functional.pad(x, flat)

kernel_name = 'gated_mix__sliding_block__sliding_block__prompt'

def setup_inputs():

    _w = (lambda a: (lambda t: t.to(torch.bfloat16) if t.is_floating_point() else t)(torch.as_tensor(a)))
    def _A_setup():
        B, S, D = 1, 2048, 576
        return {
            "x": _w((lambda *s: torch.randn(*s, dtype=torch.bfloat16) * 0.05)(B, S, D)),
            "wqkv": _w((lambda *s: torch.randn(*s, dtype=torch.bfloat16) * 0.8)(D, 3 * D)),
            "wo": _w((lambda *s: torch.randn(*s, dtype=torch.bfloat16) * 0.05)(D, D)),
        }
    _A_in = _A_setup()

    def _B_setup():
        B, S, D = 1, 2048, 576
        return {
            "x": _w((lambda *s: torch.randn(*s, dtype=torch.bfloat16) * 0.05)(B, S, D)),
            "wqkv": _w((lambda *s: torch.randn(*s, dtype=torch.bfloat16) * 0.8)(D, 3 * D)),
            "wo": _w((lambda *s: torch.randn(*s, dtype=torch.bfloat16) * 0.05)(D, D)),
        }
    _B_in = _B_setup()

    return {
        "A_x": _A_in["x"],
        "A_wqkv": _A_in["wqkv"],
        "A_wo": _A_in["wo"],
        "B_x": _B_in["x"],
        "B_wqkv": _B_in["wqkv"],
        "B_wo": _B_in["wo"],
        "gate_w": _w((lambda *s: torch.randn(*s, dtype=torch.bfloat16) * 0.05)(576) * 16.0),
    }

def reference(A_x, A_wqkv, A_wo, B_x, B_wqkv, B_wo, gate_w):
    def _A_ref(x, wqkv, wo):
        B, S, D = x.shape
        H = 32; Dh = D // H; W = 256
        qkv = (lambda x, *d: x.permute(*d))((x @ wqkv).reshape(B, S, 3, H, Dh), 2, 0, 3, 1, 4)
        q, k, v = qkv[0], qkv[1], qkv[2]
        scores = torch.einsum("bhqd,bhkd->bhqk", q, k) * (Dh ** -0.5)
        idx = torch.arange(S)
        mask = (idx[:, None] - idx[None, :] >= 0) & (idx[:, None] - idx[None, :] < W)
        scores = torch.where(mask[None, None], scores, -1e9)
        p = _softmax(scores, axis=-1)
        o = torch.einsum("bhqk,bhkd->bhqd", p, v)
        return (lambda x, *d: x.permute(*d))(o, 0, 2, 1, 3).reshape(B, S, D) @ wo

    def _B_ref(x, wqkv, wo):
        B, S, D = x.shape
        H = 32; Dh = D // H; W = 256
        qkv = (lambda x, *d: x.permute(*d))((x @ wqkv).reshape(B, S, 3, H, Dh), 2, 0, 3, 1, 4)
        q, k, v = qkv[0], qkv[1], qkv[2]
        scores = torch.einsum("bhqd,bhkd->bhqk", q, k) * (Dh ** -0.5)
        idx = torch.arange(S)
        mask = (idx[:, None] - idx[None, :] >= 0) & (idx[:, None] - idx[None, :] < W)
        scores = torch.where(mask[None, None], scores, -1e9)
        p = _softmax(scores, axis=-1)
        o = torch.einsum("bhqk,bhkd->bhqd", p, v)
        return (lambda x, *d: x.permute(*d))(o, 0, 2, 1, 3).reshape(B, S, D) @ wo

    x = A_x
    g = _sigmoid((x * gate_w).sum(-1, keepdims=True))
    a = _A_ref(x, A_wqkv, A_wo)
    b = _B_ref(x, B_wqkv, B_wo)
    return g * a + (1 - g) * b
```

```python
import re

REG_RE = re.compile(r'^(-?)(?:abs\()?\|?([vas])(?:(\d+)|\[(\d+):(\d+)\])\|?\)?$')
TRANS = ('v_exp_', 'v_log_', 'v_rcp_', 'v_rsq_', 'v_sqrt_', 'v_sin_', 'v_cos_')

def regs_of(opnd):
    o = opnd.strip()
    if o in ('vcc', 'exec', 'm0', 'scc'):
        return [o]
    if o in ('vcc_lo', 'vcc_hi'):
        return ['vcc']
    if o in ('exec_lo', 'exec_hi'):
        return ['exec']
    m = REG_RE.match(o)
    if not m:
        return []
    k = m.group(2)
    if m.group(3) is not None:
        return [k + m.group(3)]
    return [k + str(i) for i in range(int(m.group(4)), int(m.group(5)) + 1)]

def split_ops(rest):
    ops, depth, cur = [], 0, ''
    for ch in rest:
        if ch in '[(':
            depth += 1
        if ch in '])':
            depth -= 1
        if ch == ',' and depth == 0:
            ops.append(cur.strip()); cur = ''
        else:
            cur += ch
    if cur.strip():
        ops.append(cur.strip())
    return ops

class Ins:
    __slots__ = ('text', 'op', 'reads', 'writes', 'kind', 'passes', 'srcc', 'ab', 'tok', 'arg', 'wide', 'data')
    def __init__(self, text):
        self.text = text
        self.tok = None; self.arg = None; self.passes = 0; self.srcc = []; self.ab = []; self.wide = False; self.data = []
        t = text.split(';')[0].strip()
        if t.endswith(':'):
            self.op = 'label'; self.kind = 'label'; self.reads = []; self.writes = []; return
        parts = t.split(None, 1)
        op = self.op = parts[0]
        ops = split_ops(parts[1]) if len(parts) > 1 else []
        mods = ''
        if ops:
            l = ops[-1].split(None, 1)
            if len(l) > 1 and not ops[-1].startswith('hwreg'):
                ops[-1] = l[0]; mods = l[1]
        R = [regs_of(o) for o in ops]
        flat = lambda L: [r for x in L for r in x]
        reads, writes = [], []
        if op.startswith('buffer_') or op.startswith('global_'):
            if ' lds' in (' ' + mods):
                self.kind = 'dma'; reads = flat(R) + ['m0']
            elif '_store' in op or ('_atomic' in op and 'sc0' not in mods):
                self.kind = 'vst'; reads = flat(R)
                self.data = R[0] if op.startswith('buffer_') else R[1]
                self.wide = 'x3' in op or 'x4' in op
            elif '_atomic' in op:
                self.kind = 'vld'; reads = flat(R); writes = R[0]
            else:
                self.kind = 'vld'; writes = R[0]; reads = flat(R[1:])
            reads.append('exec')
        elif op.startswith('ds_'):
            if op.startswith('ds_write'):
                self.kind = 'dsw'; reads = flat(R)
            else:
                self.kind = 'dsr'; writes = R[0]; reads = flat(R[1:])
            reads.append('exec')
        elif op.startswith('v_mfma'):
            self.kind = 'mfma'; writes = R[0]; reads = flat(R[1:])
            self.ab = R[1] + R[2]; self.srcc = R[3]
            self.passes = 8 if '32x32' in op else 4
        elif op.startswith('v_'):
            self.kind = 'trans' if op.startswith(TRANS) else 'valu'
            if op.startswith('v_permlane') and 'swap' in op:
                writes = R[0] + R[1]; reads = R[0] + R[1]
            elif op.startswith('v_cmpx'):
                writes = R[0] + ['exec']; reads = flat(R[1:])
            elif op.startswith(('v_add_co', 'v_sub_co', 'v_addc_co', 'v_subb_co')):
                writes = R[0] + R[1]; reads = flat(R[2:])
            elif op.startswith(('v_fmac', 'v_pk_fmac', 'v_writelane')):
                writes = R[0]; reads = flat(R)
            elif op == 'v_nop':
                pass
            else:
                writes = R[0]; reads = flat(R[1:])
            reads.append('exec')
        elif op.startswith('s_'):
            self.kind = 'salu'
            if op.startswith(('s_load', 's_buffer_load', 's_memtime', 's_memrealtime')):
                self.kind = 'smem'; writes = R[0]; reads = flat(R[1:])
            elif op.startswith('s_cmp') or op.startswith('s_bitcmp'):
                writes = ['scc']; reads = flat(R)
            elif op.startswith('s_cbranch') or op == 's_branch':
                self.kind = 'branch'
                if 'scc' in op: reads = ['scc']
                if 'vcc' in op: reads = ['vcc']
                if 'exec' in op: reads = ['exec']
            elif op in ('s_waitcnt', 's_barrier', 's_nop', 's_sleep', 's_setprio', 's_endpgm'):
                self.kind = op[2:]
                if op == 's_nop': self.arg = int(ops[0], 0)
            elif op.startswith('s_setpc'):
                self.kind = 'branch'; reads = flat(R)
            elif op.startswith('s_swappc'):
                self.kind = 'branch'; writes = R[0]; reads = flat(R[1:])
            else:
                writes = R[0] + ['scc']; reads = flat(R[1:])
                if op.startswith(('s_mov', 's_mul', 's_getreg', 's_getpc', 's_cselect', 's_movk', 's_cmov')):
                    writes = R[0]
                if op.startswith(('s_cselect', 's_addc', 's_subb', 's_cmov')):
                    reads.append('scc')
                if op.startswith(('s_addk', 's_mulk', 's_cmov')):
                    reads += R[0]
                if 'saveexec' in op:
                    writes = writes + ['exec']; reads.append('exec')
        elif op.startswith('.'):
            self.kind = 'dir'
        else:
            raise ValueError('unknown instruction: ' + text)
        self.reads = reads; self.writes = writes

class Pseudo:
    def __init__(self, kind, arg=None):
        self.kind = kind; self.arg = arg; self.reads = []; self.writes = []; self.text = '; ' + kind; self.tok = None; self.op = kind

def I(text, tok=None):
    i = Ins(text); i.tok = tok; return i
def WAITVM(*toks): return Pseudo('waitvm', set(toks))
def WAITLG(*toks): return Pseudo('waitlg', set(toks))
def DRAIN(): return Pseudo('drain')

VALUISH = ('valu', 'trans')
def is_v(r): return r[0] in 'va' and r[1:].isdigit()
def is_s(r): return (r[0] == 's' and r[1:].isdigit()) or r == 'vcc'

def need_states(prev, cur):
    n = 0
    pk, ck = prev.kind, cur.kind
    pw = set(prev.writes)
    if pk in VALUISH:
        vw = {r for r in pw if is_v(r)}
        sw = {r for r in pw if is_s(r)}
        if ck == 'mfma' and vw & set(cur.reads): n = max(n, 2)
        if ck in VALUISH:
            if cur.op.startswith('v_permlane') and vw & set(cur.reads): n = max(n, 2)
            if cur.op.startswith(('v_readlane', 'v_readfirstlane')) and vw & set(cur.reads): n = max(n, 1)
            if 'dpp' in cur.text or 'row_' in cur.text or 'quad_perm' in cur.text:
                if vw & set(cur.reads): n = max(n, 2)
            if pk == 'trans' and ck == 'valu' and vw & set(cur.reads): n = max(n, 1)
            if sw & set(cur.reads): n = max(n, 4 if cur.op.startswith(('v_readlane', 'v_writelane')) else 2)
            if ('op_sel' in prev.text or 'sdwa' in prev.text) and not prev.op.startswith('v_pk_') and vw & set(cur.reads + cur.writes): n = max(n, 1)
        if ck in ('vld', 'vst', 'dma') and sw & set(cur.reads): n = max(n, 5)
        if ck in ('salu', 'smem', 'branch') and sw & set(cur.reads): n = max(n, 1)
        if 'exec' in pw and ck == 'mfma': n = max(n, 4)
        if 'exec' in pw and ck in VALUISH: n = max(n, 4)
    if pk == 'mfma':
        big = {4: 8, 8: 12}[prev.passes]
        if ck in VALUISH + ('vld', 'vst', 'dma', 'dsr', 'dsw'):
            if pw & (set(cur.reads) | set(cur.writes)): n = max(n, big)
        if ck == 'mfma':
            if pw & set(cur.ab): n = max(n, big)
            if pw & set(cur.srcc):
                if not (list(prev.writes) == list(cur.srcc) and prev.passes == cur.passes):
                    n = max(n, prev.passes + 2)
            elif pw & set(cur.writes):
                n = max(n, prev.passes + 2)
        if ck in VALUISH + ('vld', 'dsr') and set(prev.srcc) & set(cur.writes):
            n = max(n, prev.passes - 1)
    if pk == 'salu' and 'm0' in pw and ck == 'dma': n = max(n, 1)
    if pk == 'vst' and prev.wide and set(prev.data) & set(cur.writes):
        n = max(n, 2)
    return n

def finalize(prog, verbose=False):
    out = []
    vmq = []
    lgq = []
    def emit(ins):
        need = 0; dist = 0
        for p in reversed(out):
            if p.kind in ('dir',): continue
            if p.kind == 'label': continue
            r = need_states(p, ins) - dist
            need = max(need, r)
            dist += (p.arg + 1) if p.kind == 'nop' else 1
            if dist >= 20: break
        while need > 0:
            k = min(need, 16)
            out.append(Ins(f's_nop {k-1}')); need -= k
        out.append(ins)
    def wait(vm=None, lg=None):
        parts = []
        if vm is not None:
            vm = min(vm, 62); parts.append(f'vmcnt({vm})')
            del vmq[:max(0, len(vmq) - vm)]
        if lg is not None:
            if any(e[2] for e in lgq): lg = 0
            lg = min(lg, 14); parts.append(f'lgkmcnt({lg})')
            del lgq[:max(0, len(lgq) - lg)]
        if parts:
            out.append(Ins('s_waitcnt ' + ' '.join(parts)))
    for ins in prog:
        if isinstance(ins, Pseudo):
            if ins.kind == 'waitvm':
                pos = [i for i, e in enumerate(vmq) if e[1] in ins.arg]
                if pos: wait(vm=len(vmq) - 1 - max(pos))
            elif ins.kind == 'waitlg':
                if ins.arg:
                    pos = [i for i, e in enumerate(lgq) if e[1] in ins.arg]
                    if pos: wait(lg=len(lgq) - 1 - max(pos))
                elif lgq: wait(lg=0)
            elif ins.kind == 'drain':
                wait(vm=0, lg=0)
            continue
        touched = set(ins.reads) | set(ins.writes)
        vm = lg = None
        pos = [i for i, e in enumerate(vmq) if e[0] & touched]
        if pos: vm = len(vmq) - 1 - max(pos)
        pos = [i for i, e in enumerate(lgq) if e[0] & touched]
        if pos: lg = len(lgq) - 1 - max(pos)
        wait(vm, lg)
        if ins.kind == 'waitcnt':
            m = re.search(r'vmcnt\((\d+)\)', ins.text)
            if m: del vmq[:max(0, len(vmq) - int(m.group(1)))]
            m = re.search(r'lgkmcnt\((\d+)\)', ins.text)
            if m and (int(m.group(1)) == 0 or not any(e[2] for e in lgq)): del lgq[:max(0, len(lgq) - int(m.group(1)))]
        emit(ins)
        if ins.kind in ('vld', 'vst', 'dma'):
            vmq.append((set(ins.writes), ins.tok))
        if ins.kind in ('dsr', 'dsw'):
            lgq.append((set(ins.writes), ins.tok, False))
        if ins.kind == 'smem':
            lgq.append((set(ins.writes), ins.tok, True))
    return out

def text_of(out):
    return '\n'.join((i.text if i.kind == 'label' else '  ' + i.text) for i in out)
```

```python
import sys, math
from asmgen import *

NAME = "gated_mix__sliding_block__sliding_block__prompt"
class Cfg:
    stamps = False
    mapping = 1
    force_fallback = False
cfg = Cfg()

NX, NW = 4, 7
XR = 0
WR = 65536
TB = WR + NW * 9216
TL = TB + 16384
DUMP = TB + 20480
GW = TB + 24576
ZB = GW + 2048
LDS_BYTES = 163840
WOW = 36864
FL0 = 4096
KV0 = 1 << 20
KVW = 11264
OM0 = 13 << 20
OL0 = 17 << 20
ST0 = 18 << 20
WS_BYTES = 20 << 20
TAGC_LO, TAGC_HI = 0x7F4A7C15, 0x9E3779B9
SPIN_MAX = 1 << 17

sX, sW, sWS, sWO, sOUT, sG, sH1, sH2 = 's[4:7]', 's[8:11]', 's[12:15]', 's[16:19]', 's[20:23]', 's[24:27]', 's[40:43]', 's[44:47]'
sWV, sRB, sBR, sHG = 's28', 's29', 's30', 's31'
sCX, sCW = 's32', 's33'
sCG = 's34'
sT0, sT1, sT2, sT3 = 's35', 's38', 's39', 's48'
sTAG_LO, sTAG_HI = 's36', 's37'
sXB, sWB = 's49', 's50'
sXM, sWM = 's51', 's52'
sPW = 's53'
sKV = ['s54', 's55', 's56']
sHB = [['s57', 's58', 's59'], ['s60', 's61', 's62']]
sFL = 's63'
sLOW = 's[64:65]'
sODD = 's[66:67]'
sOM, sOL = 's68', 's69'
sP, sGAM, sCL = 's70', 's71', 's72'
sSPIN = 's73'
sRET = 's[74:75]'
sST = 's[76:77]'
sST0 = 's78'
sA, sB_, sC, sD = 's80', 's81', 's82', 's83'
sMT = ['s84', 's85', 's86', 's87', 's88']
sO5 = 's[92:95]'
sOUT5 = 's[96:99]'
sSCALE = 's89'
sFB = 's90'

vLANE = 'v1'
vXd = ['v2', 'v3', 'v4', 'v5']
vWd = ['v6', 'v7', 'v8']
vXr = ['v9', 'v10']
vWr = 'v11'
vGb, vG = 'v12', 'v13'
vTw = ['v14', 'v15', 'v16', 'v17', 'v18']
vF1, vFL, vFV = 'v19', 'v20', 'v21'
vL16, vPV = 'v22', 'v23'
vOM, vOL = 'v24', 'v25'
vT = ['v26', 'v27', 'v28', 'v29', 'v30', 'v31']
ACC = 32
GACC = 72
WF = 80
GF = 120
TAGV = 128
POLL = 130
vPA = 'v132'
vZERO = 'v133'
GFAC = 134
BIASD = 140
BIASF = 156
Q1 = 172
QL = 188
PB = 204
OST = 220
SB = 32
OA = 64
XF = 0
LK1, LKL, LV = 144, 160, 164
HK1 = [196, 216]; HKL = [212, 232]
HV = [0, 32]

def v(b, n=1): return f'v{b}' if n == 1 else f'v[{b}:{b+n-1}]'
def a(b, n=1): return f'a{b}' if n == 1 else f'a[{b}:{b+n-1}]'

P = []
OOL = []
def e(text, tok=None):
    if isinstance(text, tuple): text, tok = text
    for line in text.strip().split('\n'):
        line = line.strip()
        if line: P.append(I(line, tok))
def stamp(i):
    if cfg.stamps:
        e(f's_memtime {sST}')
        e(f's_sub_u32 {sA}, s76, {sST0}')
        e(f'v_writelane_b32 v255, {sA}, {i}')

_lbl = [0]
def newlabel(p):
    _lbl[0] += 1
    return f'L_{p}_{_lbl[0]}'

def srd(dst, lo, hi, size):
    b = int(dst[2:dst.index(':')])
    e(f's_mov_b32 s{b}, {lo}\ns_mov_b32 s{b+1}, {hi}\ns_mov_b32 s{b+2}, {size}\ns_mov_b32 s{b+3}, 0x20000')

def prologue():
    e('s_cmp_ge_u32 s2, 256')
    e('s_cbranch_scc1 L_end')
    if cfg.stamps:
        e(f's_memtime {sST}')
    e('s_load_dwordx16 s[64:79], s[0:1], 0' if False else 's_load_dwordx4 s[80:83], s[0:1], 0')
    e('s_load_dwordx2 s[84:85], s[0:1], 16')
    e('s_load_dwordx4 s[88:91], s[0:1], 32')
    e('s_load_dwordx4 s[92:95], s[0:1], 48')
    e('s_load_dwordx2 s[96:97], s[0:1], 72')
    e('s_getpc_b64 s[98:99]')
    e(f'v_and_b32 {vLANE}, 63, v0')
    e(f'v_lshlrev_b32 {vL16}, 4, {vLANE}')
    e(f'v_lshrrev_b32 {vT[0]}, 6, v0')
    e(f's_lshr_b32 {sT0}, s2, 3')
    e(f'v_readfirstlane_b32 {sWV}, {vT[0]}')
    if cfg.mapping == 1:
        e(f'''s_and_b32 {sBR}, s2, 1
        s_bfe_u32 {sT1}, s2, 0x20001
        s_lshl_b32 {sT1}, {sT1}, 2
        s_and_b32 {sT2}, {sT0}, 3
        s_add_u32 {sRB}, {sT1}, {sT2}
        s_lshr_b32 {sHG}, {sT0}, 2
        s_lshl_b32 {sT2}, {sT2}, 1
        s_add_u32 {sCX}, {sHG}, {sT2}''')
    else:
        e(f'''s_and_b32 {sBR}, s2, 1
        s_bfe_u32 {sT1}, s2, 0x10002
        s_lshl_b32 {sT1}, {sT1}, 3
        s_and_b32 {sT2}, {sT0}, 7
        s_add_u32 {sRB}, {sT1}, {sT2}
        s_bfe_u32 {sT1}, s2, 0x10001
        s_lshl_b32 {sT1}, {sT1}, 2
        s_lshr_b32 {sT3}, {sT0}, 3
        s_add_u32 {sHG}, {sT1}, {sT3}
        s_lshl_b32 {sT3}, {sT3}, 1
        s_add_u32 {sCX}, {sT2}, {sT3}''')
    e(f'''s_cmp_ge_u32 {sCX}, 9
    s_cselect_b32 {sT1}, 9, 0
    s_sub_u32 {sCX}, {sCX}, {sT1}
    s_mov_b32 {sCW}, {sCX}
    s_mov_b32 {sCG}, {sCX}''')
    e(f'''s_and_b32 {sT1}, {sWV}, 1
    s_lshl_b32 {sT1}, {sT1}, 5
    s_add_u32 {sT1}, {sT1}, {sT0}
    s_lshl_b32 {sT1}, {sT1}, 10
    s_min_u32 {sT1}, {sT1}, CODE_PF_MAX
    v_add_u32 {vT[1]}, {sT1}, {vL16}
    global_load_dwordx4 v[224:227], {vT[1]}, s[98:99]''')
    t0, t1, t2, t3, t4, t5 = vT
    e(f'''v_lshrrev_b32 {t0}, 3, {vLANE}
    v_and_b32 {t1}, 7, {vLANE}
    v_lshrrev_b32 {t2}, 1, {t0}
    v_xor_b32 {t1}, {t1}, {t2}
    v_mul_u32_u24 {t0}, 1152, {t0}
    v_lshl_add_u32 {vXd[0]}, {t1}, 4, {t0}
    v_xor_b32 {t1}, 4, {t1}
    v_lshl_add_u32 {vXd[1]}, {t1}, 4, {t0}
    v_add_u32 {vXd[1]}, {8*1152-1024}, {vXd[1]}
    v_add_u32 {vXd[2]}, {16*1152-2048}, {vXd[0]}
    v_add_u32 {vXd[3]}, {16*1152-2048}, {vXd[1]}''')
    for i, F in enumerate((0, 64, 80)):
        e(f'''v_add_u32 {t0}, {F}, {vLANE}
        v_mul_u32_u24 {t1}, 7282, {t0}
        v_lshrrev_b32 {t1}, 16, {t1}
        v_mul_u32_u24 {t2}, 9, {t1}
        v_sub_u32 {t0}, {t0}, {t2}
        v_and_b32 {t2}, 1, {t1}
        v_lshlrev_b32 {t2}, 4, {t2}
        v_and_b32 {t3}, 8, {t1}
        v_bfe_u32 {t4}, {t1}, 1, 2
        v_add3_u32 {t2}, {t2}, {t3}, {t4}
        v_mul_u32_u24 {t2}, 3456, {t2}
        v_lshl_add_u32 {vWd[i]}, {t0}, 4, {t2}''')
        if F: e(f'v_subrev_u32 {vWd[i]}, {16*F}, {vWd[i]}')
    e(f'''s_lshl_b32 {sT1}, {sRB}, 2
    s_add_u32 {sT1}, {sT1}, {sWV}
    s_mul_i32 {sXB}, {sT1}, {32*1152}
    s_lshr_b32 {sT1}, {sWV}, 1
    s_lshl_b32 {sT1}, {sT1}, 3
    s_and_b32 {sT2}, {sWV}, 1
    s_add_u32 {sT1}, {sT1}, {sT2}
    s_mul_i32 {sWB}, {sT1}, {4*3456}
    s_mul_i32 {sT1}, {sHG}, 144
    s_add_u32 {sWB}, {sWB}, {sT1}
    s_lshl_b32 {sXM}, {sWV}, 14
    s_mul_i32 {sWM}, {sWV}, 2304
    s_add_u32 {sWM}, {sWM}, {WR}''')
    srd(sX, 's80', 's81', 2048*1152)
    e(f's_cmp_eq_u32 {sBR}, 0')
    e('s_cselect_b32 s8, s82, s88\ns_cselect_b32 s9, s83, s89')
    e(f's_mov_b32 s10, {576*3456}\ns_mov_b32 s11, 0x20000')
    if cfg.stamps: e(f's_mov_b32 {sST0}, s76\nv_mov_b32 v255, 0')

def x_dma(slot):
    e(f's_lshl_b32 {sT0}, {sCX}, 7\ns_add_u32 {sT0}, {sT0}, {sXB}')
    e(f's_add_u32 m0, {sXM}, {slot*4096}')
    for i in range(4):
        e(f'buffer_load_dwordx4 {vXd[i]}, {sX}, {sT0} offen offset:{1024*i} lds', tok=('X', x_dma.n))
    e(f's_add_u32 {sCX}, {sCX}, 1\ns_cmp_eq_u32 {sCX}, 9\ns_cselect_b32 {sCX}, 0, {sCX}')
    x_dma.n += 1
x_dma.n = 0
SEG = [1]*9 + [2]*9 + [0]*9
def w_dma(j):
    e(f's_mul_i32 {sT1}, {sCW}, {64*3456}\ns_add_u32 {sT1}, {sT1}, {sWB}')
    if SEG[j]: e(f's_add_u32 {sT1}, {sT1}, {SEG[j]*1152}')
    e(f's_add_u32 m0, {sWM}, {(j % NW)*9216}')
    for i, F in enumerate((0, 64, 80)):
        e(f'buffer_load_dwordx4 {vWd[i]}, {sW}, {sT1} offen offset:{16*F} lds', tok=('W', j))
    e(f's_add_u32 {sCW}, {sCW}, 1\ns_cmp_eq_u32 {sCW}, 9\ns_cselect_b32 {sCW}, 0, {sCW}')

def setup_rest():
    t0, t1, t2, t3, t4, t5 = vT
    srd(sOUT, 's94', 's95', 2048*1152)
    e(f's_cmp_lt_u32 {sWV}, 2')
    e('s_cselect_b32 s16, s84, s90\ns_cselect_b32 s17, s85, s91')
    e(f's_mov_b32 s18, {576*1152}\ns_mov_b32 s19, 0x20000')
    for d, s_ in ((1, 40), (2, 44)):
        e(f's_mov_b32 s{s_}, s96\ns_mov_b32 s{s_+1}, s97\ns_cmp_ge_u32 {sRB}, {d}\ns_cselect_b32 s{s_+2}, {WS_BYTES}, 0\ns_mov_b32 s{s_+3}, 0x20000')
    e(f'''v_and_b32 {t0}, 15, {vLANE}
    v_lshrrev_b32 {t1}, 4, {vLANE}
    v_lshrrev_b32 {t2}, 1, {t0}
    v_xor_b32 {t2}, {t1}, {t2}
    v_lshlrev_b32 {t3}, 7, {t0}
    v_add_u32 {t3}, {sXM}, {t3}
    v_lshl_add_u32 {vXr[0]}, {t2}, 4, {t3}
    v_xor_b32 {vXr[1]}, 64, {vXr[0]}
    v_lshlrev_b32 {vGb}, 4, {t1}
    v_add_u32 {vGb}, {GW}, {vGb}''')
    e(f'''v_and_b32 {t2}, 1, {t1}
    v_lshlrev_b32 {t2}, 3, {t2}
    v_bfe_u32 {t3}, {vLANE}, 2, 2
    v_lshl_add_u32 {t2}, {t3}, 1, {t2}
    v_lshrrev_b32 {t4}, 1, {t1}
    v_add_u32 {t2}, {t2}, {t4}
    v_mul_u32_u24 {t2}, 144, {t2}
    v_and_b32 {t4}, 3, {vLANE}
    v_lshl_add_u32 {vWr}, {t4}, 3, {t2}
    v_add_u32 {vWr}, {WR}, {vWr}''')
    e(f'''s_lshl_b32 {sT0}, {sWV}, 10
    s_add_u32 {sT0}, {sT0}, {TB}
    v_lshlrev_b32 {t2}, 4, {t0}
    v_add_u32 {t2}, {sT0}, {t2}
    v_lshlrev_b32 {t1}, 4, {t1}''')
    for n in range(5):
        offs = []
        for gq in range(4):
            G = 4*n + gq
            if G >= 18: o = 20480
            else:
                p, g9 = divmod(G, 9)
                if g9 == 4: o = 16384 + p*512
                else:
                    head = 2*p + (g9 > 4); mi = g9 if g9 < 4 else g9-5
                    o = head*4096 + (mi >> 1)*512 + (mi & 1)*8
            offs.append(o)
        e(f'''s_mov_b32 {sA}, {offs[0] | offs[1] << 16}
        s_mov_b32 {sB_}, {offs[2] | offs[3] << 16}
        v_lshrrev_b64 v[30:31], {t1}, s[80:81]
        v_and_b32 v30, 0xffff, v30
        v_add_u32 {vTw[n]}, v30, {t2}''')
    e(f's_mov_b32 s64, -1\ns_mov_b32 s65, 0')
    e(f's_bitcmp1_b32 {sWV}, 0\ns_cselect_b32 s66, -1, 0\ns_mov_b32 s67, s66')
    e(f'''s_lshl_b32 {sT0}, {sWV}, 12
    s_add_u32 {sT0}, {sT0}, {TB}
    v_add_u32 {vF1}, {sT0}, {vL16}
    s_lshr_b32 {sT1}, {sWV}, 1
    s_lshl_b32 {sT1}, {sT1}, 9
    s_add_u32 {sT1}, {sT1}, {TL}
    s_and_b32 {sT2}, {sWV}, 1
    s_lshl_b32 {sT2}, {sT2}, 2
    v_and_b32 {t0}, 31, {vLANE}
    v_lshlrev_b32 {t0}, 4, {t0}
    v_add_u32 {t0}, {sT1}, {t0}
    v_mov_b32 {t1}, {sT2}
    v_cndmask_b32 {t1}, 8, {t1}, {sLOW}
    v_add_u32 {vFL}, {t0}, {t1}''')
    e(f'''v_lshrrev_b32 {t0}, 5, {vLANE}
    v_bfe_u32 {t1}, {vLANE}, 2, 2
    v_lshl_add_u32 {t0}, {t0}, 2, {t1}
    v_lshlrev_b32 {t0}, 4, {t0}
    v_bfe_u32 {t1}, {vLANE}, 1, 1
    v_lshlrev_b32 {t1}, 9, {t1}
    v_and_b32 {t2}, 1, {vLANE}
    v_lshl_add_u32 {t1}, {t2}, 3, {t1}
    v_add_u32 {t1}, {sT0}, {t1}
    v_and_b32 {t2}, 3, {vLANE}
    v_min_u32 {t2}, 1, {t2}
    v_lshlrev_b32 {t2}, 3, {t2}
    v_add_u32 {t2}, {sT1}, {t2}
    v_and_b32 {t3}, 16, {vLANE}
    v_cmp_eq_u32 vcc, 0, {t3}
    v_cndmask_b32 {t1}, {t2}, {t1}, vcc
    v_add_u32 {vFV}, {t0}, {t1}''')
    e(f'''v_lshlrev_b32 {t0}, 4, v0
    v_add_u32 {t0}, {TL+8}, {t0}
    v_mov_b32 v30, 0x3f803f80
    v_mov_b32 v31, 0x3f803f80
    ''')
    e(f'ds_write_b64 {t0}, v[30:31]', tok='T')
    e(f'''v_and_b32 {t0}, 31, {vLANE}
    v_min_u32 {t0}, 23, {t0}
    v_lshrrev_b32 {t1}, 5, {vLANE}
    v_mul_u32_u24 {t2}, 24, {t1}
    v_add_lshl_u32 {vPV}, {t0}, {t2}, 4
    v_bfe_u32 {t0}, {vLANE}, 4, 1
    v_lshlrev_b32 {t0}, 15, {t0}
    v_lshl_add_u32 {t0}, {t1}, 8, {t0}
    v_and_b32 {t2}, 15, {vLANE}
    v_lshl_add_u32 {vOM}, {t2}, 4, {t0}
    v_lshlrev_b32 {t0}, 2, {vLANE}
    v_mov_b32 {t2}, 0x7f000000
    v_cndmask_b32 {vOL}, {t2}, {t0}, {sLOW}''')
    e(f'''s_lshl_b32 {sT0}, {sRB}, 1
    s_add_u32 {sT0}, {sT0}, {sBR}
    s_lshl_b32 {sT0}, {sT0}, 3
    s_add_u32 {sT0}, {sT0}, {sHG}
    s_lshl_b32 {sT0}, {sT0}, 2
    s_add_u32 {sPW}, {sT0}, {sWV}
    s_mul_i32 {sKV[0]}, {sPW}, {KVW}
    s_add_u32 {sKV[0]}, {sKV[0]}, {KV0}
    s_add_u32 {sKV[1]}, {sKV[0]}, 4096
    s_add_u32 {sKV[2]}, {sKV[0]}, 8192
    s_lshl_b32 {sFL}, {sPW}, 7
    s_add_u32 {sFL}, {sFL}, {FL0}''')
    for d in (1, 2):
        e(f's_cmp_ge_u32 {sRB}, {d}\ns_cselect_b32 {sT0}, {64*d*KVW}, 0')
        for k in range(3): e(f's_sub_u32 {sHB[d-1][k]}, {sKV[k]}, {sT0}')
    e(f'''s_lshl_b32 {sT0}, {sBR}, 3
    s_add_u32 {sT0}, {sT0}, {sHG}
    s_lshl_b32 {sT0}, {sT0}, 2
    s_add_u32 {sT0}, {sT0}, {sWV}
    s_lshl_b32 {sOM}, {sT0}, 9
    s_lshl_b32 {sT1}, {sRB}, 18
    s_add_u32 {sOM}, {sOM}, {sT1}
    s_add_u32 {sOM}, {sOM}, {OM0}
    s_lshl_b32 {sOL}, {sT0}, 7
    s_lshl_b32 {sT1}, {sRB}, 15
    s_add_u32 {sOL}, {sOL}, {sT1}
    s_add_u32 {sOL}, {sOL}, {OL0}''')
    e(f'''v_and_b32 {t0}, 31, {vLANE}
    v_lshrrev_b32 {t1}, 5, {vLANE}
    v_lshlrev_b32 {t1}, 2, {t1}
    v_sub_u32 {t0}, {t0}, {t1}
    s_mov_b32 {sA}, 0xff800000''')
    for r in range(16):
        c = 8*(r >> 2) + (r & 3)
        e(f'''v_subrev_u32 {t1}, {c}, {t0}
        v_ashrrev_i32 {t1}, 31, {t1}
        v_and_b32 {v(BIASD+r)}, {sA}, {t1}
        v_xor_b32 {v(BIASF+r)}, {sA}, {v(BIASD+r)}''')
    for i in range(4):
        e(f'v_mov_b32 {v(QL+4*i+1)}, 0\nv_mov_b32 {v(QL+4*i+2)}, 0')
    sc = math.log2(math.e) / math.sqrt(18.0)
    import struct
    e(f's_mov_b32 {sSCALE}, {struct.unpack("<I", struct.pack("<f", sc))[0]:#x}')
    e(f'v_add_u32 {v(TAGV)}, {TAGC_LO:#x}, {v(TAGV)}\nv_add_u32 {v(TAGV+1)}, {TAGC_HI:#x}, {v(TAGV+1)}')

def acc(m, n): return ACC + (m*5 + n)*4
def xf(c, ks, m): return XF + ((c*2 + ks)*2 + m)*4

def w_reads(j, ks):
    L = []
    buf = WF + ((2*j + ks) & 1)*20
    for n in range(5):
        for rd in range(2):
            L.append(f'ds_read_b64_tr_b16 {v(buf+4*n+2*rd, 2)}, {vWr} offset:{(j % NW)*9216 + ks*4608 + rd*2304 + n*32}')
    return L
def mfmas(j, ks):
    L = []
    buf = WF + ((2*j + ks) & 1)*20
    first = (j % 9 == 0 and ks == 0)
    for n in range(5):
        for m in range(2):
            c = '0' if first else v(acc(m, n), 4)
            L.append(f'v_mfma_f32_16x16x32_bf16 {v(acc(m,n),4)}, {v(buf+4*n,4)}, {a(xf(j % 9, ks, m),4)}, {c}')
    if j < 9:
        for m in range(2):
            c = '0' if first else v(GACC+4*m, 4)
            L.append(f'v_mfma_f32_16x16x32_bf16 {v(GACC+4*m,4)}, {v(GF+4*ks,4)}, {a(xf(j, ks, m),4)}, {c}')
    return L
def interleave(A, B):
    out = []
    nb = len(B); na = len(A); k = 0
    for i, x in enumerate(A):
        out.append(x)
        want = (i + 1) * nb // na if na else nb
        while k < want:
            out.append(B[k]); k += 1
    out += B[k:]
    return out

def flag_store(stage):
    e(f's_add_u32 {sT0}, {sFL}, {stage*1024*128}')
    e(f'buffer_store_dwordx2 {v(TAGV,2)}, {vZERO}, {sWS}, {sT0} offen sc1')

def stage_epilogue(st):
    for n in range(5):
        for m in range(2):
            b = acc(m, n)
            if st == 2:
                for r in range(4): e(f'v_mul_f32 {v(b+r)}, {sSCALE}, {v(b+r)}')
            e(f'v_cvt_pk_bf16_f32 {v(b)}, {v(b)}, {v(b+1)}')
            e(f'v_cvt_pk_bf16_f32 {v(b+1)}, {v(b+2)}, {v(b+3)}')
            e(f'ds_write_b64 {vTw[n]}, {v(b,2)} offset:{m*256}', tok='T')
    if st == 0:
        t0, t1, t2 = vT[0], vT[1], vT[2]
        e(f'''v_and_b32 {t2}, 15, {vLANE}
        v_lshlrev_b32 {t2}, 2, {t2}
        s_lshl_b32 {sT0}, {sWV}, 7
        s_add_u32 {sT0}, {sT0}, {ZB}
        v_add_u32 {t2}, {sT0}, {t2}
        s_cmp_eq_u32 {sBR}, 0
        s_cselect_b64 vcc, -1, 0''')
        for m in range(2):
            z = v(GACC+4*m)
            e(f'''v_cvt_pk_bf16_f32 {z}, 0, {z}
            v_mul_f32 {z}, 0xbfb8aa3b, {z}
            v_exp_f32 {z}, {z}
            v_add_f32 {z}, 1.0, {z}
            v_rcp_f32 {z}, {z}
            v_cvt_pk_bf16_f32 {z}, 0, {z}
            v_sub_f32 {t0}, 1.0, {z}
            v_cvt_pk_bf16_f32 {t0}, 0, {t0}
            v_cndmask_b32 {z}, {t0}, {z}, vcc''')
            e(f'ds_write_b32 {t2}, {z} offset:{m*64}', tok='T')

def frag_reads(st):
    if st == 0:
        for t in range(4): e(f'ds_read_b128 {a(LK1+4*t,4)}, {vF1} offset:{t*1024}')
        e(f'ds_read2st64_b32 {a(LKL,2)}, {vFL} offset0:0 offset1:4')
        e(f'ds_read2st64_b32 {a(LKL+2,2)}, {vFL} offset0:8 offset1:12')
        e(f'''v_and_b32 {vT[0]}, 31, {vLANE}
        v_lshlrev_b32 {vT[0]}, 2, {vT[0]}
        v_add_u32 {vT[0]}, {ZB}, {vT[0]}''')
        for i in range(4): e(f'ds_read_b32 {v(GFAC+i)}, {vT[0]} offset:{i*128}')
        for t in range(4): e(f'buffer_store_dwordx4 {a(LK1+4*t,4)}, {vL16}, {sWS}, {sKV[0]} offen offset:{t*1024} sc1', tok='KP')
        e(f'buffer_store_dwordx4 {a(LKL,4)}, {vL16}, {sWS}, {sKV[1]} offen sc1', tok='KP')
    elif st == 1:
        for t in range(4):
            for j in range(2):
                for q in range(2):
                    e(f'ds_read_b64_tr_b16 {a(LV+8*t+4*j+2*q,2)}, {vFV} offset:{t*1024 + (16*j+8*q)*16}')
        for f in range(8):
            so, im = (sKV[1], 1024+768*f) if f < 4 else (sKV[2], 768*(f-4))
            e(f'buffer_store_dwordx4 {a(LV+4*f,4)}, {vPV}, {sWS}, {so} offen offset:{im} sc1', tok='VP')
    else:
        for t in range(4): e(f'ds_read_b128 {v(Q1+4*t,4)}, {vF1} offset:{t*1024}')
        e(f'ds_read2st64_b32 v[26:27], {vFL} offset0:0 offset1:4')
        e(f'ds_read2st64_b32 v[28:29], {vFL} offset0:8 offset1:12')

def phase1():
    for c in range(NX):
        x_dma(c); w_dma(c)
        if c == 0:
            srd(sG, 's92', 's93', 1152)
            e(f's_mov_b32 m0, {GW}')
            e(f'buffer_load_dwordx4 {vL16}, {sG}, 0 offen lds', tok='G')
            e(f'buffer_load_dwordx4 {vL16}, {sG}, 0 offen offset:1024 lds', tok='G')
            srd(sWS, 's96', 's97', WS_BYTES)
            e(f'v_mov_b32 {vZERO}, 0')
            e(f'buffer_load_dwordx2 {v(TAGV,2)}, {vZERO}, {sWS}, 0 offen sc1', tok='G')
    for j in range(NX, NW): w_dma(j)
    setup_rest()
    stamp(1)
    pend = None
    for j in range(27):
        toks = [('W', j)]
        if j < 9: toks.append(('X', j))
        if j == 0: toks.append('G')
        P.append(WAITVM(*toks))
        P.append(WAITLG('T', 'XR'))
        e('s_barrier')
        if j == 1: stamp(2)
        if j >= 2 and j - 2 + NW < 27: w_dma(j - 2 + NW)
        if j >= 1 and j - 1 + NX < 9: x_dma((j - 1) % NX)
        if j in (10, 19):
            frag_reads((j - 10) // 9)
        if j == 15: P.append(WAITVM('KP')); flag_store(0)
        if j == 24: P.append(WAITVM('VP')); flag_store(1)
        r0 = w_reads(j, 0)
        if j < 9:
            e(f's_lshl_b32 {sT0}, {sCG}, 7\nv_add_u32 {vG}, {sT0}, {vGb}')
            e(f's_add_u32 {sCG}, {sCG}, 1\ns_cmp_eq_u32 {sCG}, 9\ns_cselect_b32 {sCG}, 0, {sCG}')
            xr = [(f'ds_read_b128 {a(xf(j, ks, m),4)}, {vXr[ks]} offset:{(j % NX)*4096 + m*2048}', 'XR') for ks in range(2) for m in range(2)]
            r0 = xr[:2] + [f'ds_read_b128 {v(GF,4)}, {vG}'] + r0 + xr[2:]
        if pend is not None:
            for x in interleave(pend, r0): e(x)
        else:
            for x in r0: e(x)
        if j in (9, 18):
            stamp(3 + j // 9 - 1)
            stage_epilogue(j // 9 - 1)
        r1 = w_reads(j, 1)
        if j < 9: r1 = r1 + [f'ds_read_b128 {v(GF+4,4)}, {vG} offset:64']
        for x in interleave(mfmas(j, 0), r1): e(x)
        pend = mfmas(j, 1)
    for x in pend: e(x)
    stamp(5)
    stage_epilogue(2)
    P.append(WAITLG()); e('s_barrier')
    frag_reads(2)
    P.append(WAITLG()); e('s_barrier')
    stamp(6)

def poll(addr_setup, mask_lanes, label):
    L, D = newlabel(label), newlabel(label + 'd')
    P.append(DRAIN())
    e(f's_mov_b32 {sSPIN}, {SPIN_MAX}')
    e(f'{L}:')
    e(f'buffer_load_dwordx2 {v(POLL,2)}, {vPA}, {sWS}, 0 offen sc1')
    e(f's_sub_u32 {sSPIN}, {sSPIN}, 1')
    e(f's_cmp_eq_u32 {sSPIN}, 0')
    e(f's_cbranch_scc1 {D}')
    e(f'v_cmp_ne_u64 vcc, {v(POLL,2)}, {v(TAGV,2)}')
    e(f's_cbranch_vccnz {L}')
    e(f'{D}:')
    P.append(DRAIN())

def wo_dma():
    t0, t1, t2 = vT[0], vT[1], vT[2]
    e(f'''v_lshrrev_b32 {t0}, 3, {vLANE}
    v_and_b32 {t1}, 7, {vLANE}
    v_and_b32 {t2}, 6, {t0}
    v_xor_b32 {t1}, {t1}, {t2}
    v_mul_u32_u24 {t0}, 1152, {t0}
    v_lshl_add_u32 {vWd[0]}, {t1}, 4, {t0}
    s_and_b32 {sT0}, {sWV}, 1
    s_mul_i32 {sT0}, {sT0}, {288*1152}
    s_lshl_b32 {sT1}, {sCL}, 7
    s_add_u32 {sT0}, {sT0}, {sT1}
    s_mul_i32 {sWM}, {sWV}, {WOW}''')
    for i in range(36):
        if i % 4 == 0: e(f's_add_u32 m0, {sWM}, {i*1024}')
        e(f's_add_u32 {sT1}, {sT0}, {8*i*1152 - 1024*(i % 4)}')
        e(f'buffer_load_dwordx4 {vWd[0]}, {sWO}, {sT1} offen offset:{1024*(i % 4)} lds', tok='WO')

def p3_decode():
    e(f'''s_and_b32 {sT0}, s2, 7
    s_lshl_b32 {sT0}, {sT0}, 5
    s_lshr_b32 {sT1}, s2, 3
    s_add_u32 {sP}, {sT0}, {sT1}
    s_mul_i32 {sGAM}, {sP}, 7282
    s_lshr_b32 {sGAM}, {sGAM}, 16
    s_mul_i32 {sT0}, {sGAM}, 9
    s_sub_u32 {sCL}, {sP}, {sT0}''')

def kfr(t):
    if t >= 0: k1, kl, vv, tt = LK1, LKL, LV, t
    elif t >= -4: k1, kl, vv, tt = HK1[0], HKL[0], HV[0], t + 4
    else: k1, kl, vv, tt = HK1[1], HKL[1], HV[1], t + 8
    return a(k1+4*tt, 4), a(kl + (tt & 2), 2), tt & 1, a(vv+8*tt, 4), a(vv+8*tt+4, 4)

def qk(i, t, S):
    k1, kl, par, _, _ = kfr(t)
    c = v(BIASD, 16) if t == i else (v(BIASF, 16) if t == i - 8 else '0')
    return [f'v_mfma_f32_32x32x16_bf16 {v(S,16)}, {k1}, {v(Q1+4*i,4)}, {c}',
            f'v_mfma_f32_32x32x8_bf16 {v(S,16)}, {kl}, {v(QL+4*i+2*par,2)}, {v(S,16)}']
def pv(i, t, Pb, first):
    _, _, _, v0_, v1_ = kfr(t)
    O = v(OA+16*i, 16)
    return [f'v_mfma_f32_32x32x16_bf16 {O}, {v0_}, {v(Pb,4)}, {"0" if first else O}',
            f'v_mfma_f32_32x32x16_bf16 {O}, {v1_}, {v(Pb+4,4)}, {O}']
def softmax_ops(S, Pb):
    G = []
    for g in range(4):
        L = [f'v_exp_f32 {v(S+4*g+k)}, {v(S+4*g+k)}' for k in range(4)]
        L += [f'v_cvt_pk_bf16_f32 {v(Pb+2*g)}, {v(S+4*g)}, {v(S+4*g+1)}', f'v_cvt_pk_bf16_f32 {v(Pb+2*g+1)}, {v(S+4*g+2)}, {v(S+4*g+3)}']
        G.append(L)
    return G

def standin():
    for i in range(4):
        e(f'v_cndmask_b32 {v(QL+4*i)}, 0, v{26+i}, {sLOW}')
        e(f'v_mov_b32 {v(QL+4*i+3)}, {v(QL+4*i)}')
    for i in range(4):
        for x in qk(i, i, OA+16*i): e(x)
    for i in range(4):
        S = OA + 16*i
        e(f'v_max3_f32 {v(S)}, {v(S)}, {v(S+1)}, {v(S+2)}')
        for k in range(3, 15, 2): e(f'v_max3_f32 {v(S)}, {v(S)}, {v(S+k)}, {v(S+k+1)}')
        e(f'v_max_f32 {v(S)}, {v(S)}, {v(S+15)}')
        e(f'v_mov_b32 {v(S+1)}, {v(S)}')
    for i in range(4):
        S = OA + 16*i
        e(f'v_permlane32_swap_b32 {v(S)}, {v(S+1)}')
    for i in range(4):
        S = OA + 16*i
        e(f'v_max_f32 {v(S)}, {v(S)}, {v(S+1)}')
        e(f'v_cvt_pk_bf16_f32 {v(S)}, -{v(S)}, 0')
        e(f'v_cndmask_b32 {v(QL+4*i)}, {v(S)}, {v(QL+4*i)}, {sLOW}')
        e(f'v_mov_b32 {v(QL+4*i+3)}, {v(QL+4*i)}')

def run_steps(steps, started, hooks=None):
    n = len(steps)
    hooks = hooks or {}
    for x in qk(*steps[0], SB): e(x)
    for k in range(n + 1):
        M = []
        if k + 1 < n: M += qk(*steps[k+1], SB + 16*((k+1) & 1))
        if k >= 1:
            i, t = steps[k-1]
            M += pv(i, t, PB + 8*((k-1) & 1), i not in started); started.add(i)
        G = softmax_ops(SB + 16*(k & 1), PB + 8*(k & 1)) if k < n else [[], [], [], []]
        for g in range(4):
            if g < len(M): e(M[g])
            for x in G[g]: e(x)
        if k in hooks: hooks[k]()

def o_epilogue(i):
    O = OA + 16*i
    t0, t1, t2 = vT[0], vT[1], vT[2]
    FBL, RET = f'L_fb_{i}', f'L_fbret_{i}'
    e(f'{RET}:')
    e(f'v_rcp_f32 {t0}, {v(O+12)}')
    e(f'v_cndmask_b32 {v(O+8)}, {v(O+8)}, {v(O+10)}, {sODD}')
    e(f'v_cndmask_b32 {v(O+9)}, {v(O+9)}, {v(O+11)}, {sODD}')
    e(f'v_mul_f32 {t0}, {t0}, {v(GFAC+i)}')
    for r in range(10): e(f'v_mul_f32 {v(O+r)}, {t0}, {v(O+r)}')
    for r in range(5): e(f'v_cvt_pk_bf16_f32 {v(OST+r)}, {v(O+2*r)}, {v(O+2*r+1)}')
    e(f's_add_u32 {sT0}, {sOM}, {i*65536}\ns_add_u32 {sT1}, {sOL}, {i*8192}')
    e(f'buffer_store_dwordx4 {v(OST,4)}, {vOM}, {sWS}, {sT0} offen sc1', tok=('O', i))
    e(f'buffer_store_dword {v(OST+4)}, {vOL}, {sWS}, {sT1} offen sc1', tok=('O', i))

def attention():
    standin()
    stamp(7)
    p3_decode()
    e(f's_min_u32 {sCL}, {sCL}, 8')
    wo_dma()
    started = set()
    local = [(i, t) for i in (3, 2, 1, 0) for t in range(i, -1, -1)]
    run_steps(local, started)
    stamp(8)
    t0, t1, t2 = vT[0], vT[1], vT[2]
    e(f'''s_cmp_ge_u32 {sRB}, 1
    s_cselect_b32 {sA}, {64*128}, 0
    s_cmp_ge_u32 {sRB}, 2
    s_cselect_b32 {sB_}, {128*128}, 0
    s_sub_u32 {sA}, {sFL}, {sA}
    s_sub_u32 {sB_}, {sFL}, {sB_}
    v_mov_b32 {t0}, {sA}
    v_mov_b32 {t1}, {sB_}
    v_cndmask_b32 {t0}, {t1}, {t0}, {sLOW}
    v_and_b32 {t1}, 1, {vLANE}
    v_lshlrev_b32 {t1}, 17, {t1}
    v_add_u32 {vPA}, {t0}, {t1}''')
    poll(None, None, 'kv')
    stamp(9)
    for d, srd_ in ((0, sH1), (1, sH2)):
        for t in range(4): e(f'buffer_load_dwordx4 {a(HK1[d]+4*t,4)}, {vL16}, {srd_}, {sHB[d][0]} offen offset:{t*1024} sc1')
        e(f'buffer_load_dwordx4 {a(HKL[d],4)}, {vL16}, {srd_}, {sHB[d][1]} offen sc1')
        for f in range(8):
            so, im = (sHB[d][1], 1024+768*f) if f < 4 else (sHB[d][2], 768*(f-4))
            e(f'buffer_load_dwordx4 {a(HV[d]+4*f,4)}, {vPV}, {srd_}, {so} offen offset:{im} sc1')
    halo = [(i, t) for i in (3, 2, 1, 0) for t in range(-1, i - 9, -1)]
    hooks = {}
    ends = {}
    for k, (i, t) in enumerate(halo): ends[i] = k
    def mk(i):
        def h():
            o_epilogue(i)
        return h
    def mkf(i):
        def h():
            P.append(WAITVM(('O', i))); flag_store(2 + i)
        return h
    for i in (3, 2, 1):
        hooks[ends[i] + 2] = mk(i)
        hooks[ends[i] + 6] = mkf(i)
    run_steps(halo, started, hooks)
    stamp(10)
    o_epilogue(0)
    P.append(WAITVM(('O', 0))); flag_store(2)
    stamp(11)

WOF = 0
OF = 144
PACC = 32
def phase3():
    t0, t1, t2, t3, t4, t5 = vT
    LS = newlabel('noep')
    e(f's_cmp_lg_u32 {sPW}, 0')
    e(f's_cbranch_scc1 {LS}')
    for k in range(4):
        e(f'v_lshlrev_b32 {vPA}, 9, {vLANE}\nv_add_u32 {vPA}, {FL0 + k*64*512}, {vPA}')
        poll(None, None, 'ep')
    e(f'buffer_store_dwordx2 {v(TAGV,2)}, {vZERO}, {sWS}, 0 offen sc1')
    e(f'{LS}:')
    e(f's_cmp_ge_u32 {sP}, 252')
    e('s_cbranch_scc1 L_fin')
    e(f'''s_lshr_b32 {sT0}, {sGAM}, 1
    s_add_u32 {sT0}, {sT0}, 2
    s_lshl_b32 {sT0}, {sT0}, 3
    s_and_b32 {sT1}, {sGAM}, 1
    s_add_u32 {sMT[4]}, {sT0}, {sT1}
    s_add_u32 {sMT[2]}, {sMT[4]}, 2
    s_add_u32 {sMT[1]}, {sMT[4]}, 4
    s_add_u32 {sMT[0]}, {sMT[4]}, 6
    s_and_b32 {sMT[3]}, {sGAM}, 15
    s_cmp_lt_u32 {sGAM}, 16
    s_mov_b32 s92, s12
    s_mov_b32 s93, s13
    s_cselect_b32 s94, {WS_BYTES}, 0
    s_mov_b32 s95, 0x20000
    s_mov_b32 s96, s20
    s_mov_b32 s97, s21
    s_cselect_b32 s98, {2048*1152}, 0
    s_mov_b32 s99, 0x20000
    s_cselect_b32 {sMT[3]}, {sMT[3]}, {sMT[2]}''')
    e(f'''v_lshrrev_b32 {t0}, 4, {vLANE}
    v_bfe_u32 {t1}, {vLANE}, 2, 2
    v_and_b32 {t2}, 3, {vLANE}
    v_lshlrev_b32 {t2}, 3, {t2}
    v_add_u32 {t2}, {sWM}, {t2}
    v_lshrrev_b32 {t3}, 1, {t0}
    v_and_b32 {t4}, 1, {t0}
    v_mul_u32_u24 {t5}, 20, {t3}
    v_lshl_add_u32 {t5}, {t4}, 2, {t5}
    v_add_u32 {t5}, {t5}, {t1}
    v_lshl_add_u32 v2, {t5}, 7, {t2}
    v_xor_b32 {t3}, {t3}, {t4}
    v_lshrrev_b32 {t4}, 1, {t1}
    v_lshl_add_u32 {t3}, {t3}, 1, {t4}
    v_lshl_add_u32 v2, {t3}, 5, v2
    v_xor_b32 v3, 32, v2
    v_xor_b32 v4, 64, v2
    v_xor_b32 v5, 96, v2
    v_mul_u32_u24 {t5}, 72, {t0}
    v_add3_u32 {t5}, {t5}, {t1}, 16
    v_lshl_add_u32 v6, {t5}, 7, {t2}
    v_lshl_add_u32 v6, {t4}, 5, v6
    v_xor_b32 v7, 32, v6
    v_xor_b32 v8, 64, v6
    v_xor_b32 v9, 96, v6''')
    P.append(WAITVM('WO'))
    for s in range(8):
        for n in range(4):
            for rd in range(2):
                e(f'ds_read_b64_tr_b16 {a(WOF+(s*4+n)*4+2*rd,2)}, v{2 + (n ^ (2*(s & 1)))} offset:{(36*s+8*rd)*128}')
    for n in range(4):
        for rd in range(2):
            e(f'ds_read_b64_tr_b16 {a(WOF+(32+n)*4+2*rd,2)}, v{6 + (n ^ (2*rd))} offset:{rd*36*128}')
    e(f'''v_lshrrev_b32 {t0}, 4, {vLANE}
    v_and_b32 {t1}, 15, {vLANE}
    v_lshlrev_b32 {t1}, 2, {t1}
    v_lshl_add_u32 v10, {t0}, 9, {t1}
    v_and_b32 v11, 15, {vLANE}
    v_lshlrev_b32 v11, 7, v11''')
    stamp(12)
    for sl in range(5):
        mt = sMT[sl]
        ws_ = sO5 if sl == 3 else sWS
        e(f'''s_lshr_b32 {sT0}, {mt}, 3
        s_lshl_b32 {sT0}, {sT0}, 2
        s_add_u32 {sT0}, {sT0}, {sWV}
        s_lshl_b32 {sT0}, {sT0}, 11
        s_bfe_u32 {sT1}, {mt}, 0x20001
        s_lshl_b32 {sT1}, {sT1}, 17
        s_add_u32 {sT0}, {sT0}, {sT1}
        s_add_u32 {sT0}, {sT0}, {FL0 + 2*1024*128}
        v_add_u32 {vPA}, {sT0}, v11''')
        poll(None, None, 'o')
        if sl == 4: stamp(13)
        of = OF + 36*(sl & 1)
        e(f'''s_lshl_b32 {sT0}, {mt}, 15
        s_lshl_b32 {sT1}, {sWV}, 13
        s_add_u32 {sT0}, {sT0}, {sT1}
        s_add_u32 {sT0}, {sT0}, {OM0}
        s_add_u32 {sT1}, {sT0}, 4096
        s_lshr_b32 {sT2}, {mt}, 1
        s_lshl_b32 {sT2}, {sT2}, 13
        s_lshl_b32 {sT3}, {sWV}, 11
        s_add_u32 {sT2}, {sT2}, {sT3}
        s_and_b32 {sT3}, {mt}, 1
        s_lshl_b32 {sT3}, {sT3}, 6
        s_add_u32 {sT2}, {sT2}, {sT3}
        s_add_u32 {sT2}, {sT2}, {OL0}''')
        for s in range(8):
            e(f'buffer_load_dwordx4 {a(of+4*s,4)}, {vL16}, {ws_}, {sT0 if s < 4 else sT1} offen offset:{(s & 3)*1024} sc1')
        for q in range(4):
            e(f'buffer_load_dword {a(of+32+q)}, v10, {ws_}, {sT2} offen offset:{q*128} sc1')
        for s in range(9):
            for n in range(4):
                d = v(PACC+16*sl+4*n, 4)
                e(f'v_mfma_f32_16x16x32_bf16 {d}, {a(WOF+(s*4+n)*4,4)}, {a(of+4*s,4)}, {"0" if s == 0 else d}')
    stamp(14)
    e(f'''v_and_b32 {t0}, 15, {vLANE}
    v_lshrrev_b32 {t1}, 4, {vLANE}
    v_xor_b32 {t2}, {t0}, {t1}
    v_lshlrev_b32 {t2}, 4, {t2}
    v_lshl_add_u32 {t2}, {t0}, 8, {t2}
    v_add_u32 v2, {sWM}, {t2}
    v_xor_b32 v3, 64, v2
    v_xor_b32 v4, 128, v2
    v_xor_b32 v5, 192, v2
    s_lshl_b32 {sT0}, {sWV}, 2
    v_add_u32 {t1}, {sT0}, {t1}
    v_xor_b32 {t2}, {t0}, {t1}
    v_lshlrev_b32 {t2}, 4, {t2}
    v_lshl_add_u32 v6, {t1}, 8, {t2}
    v_add_u32 v7, {2*WOW}, v6
    v_mul_u32_u24 {t1}, 1152, {t1}
    v_lshl_add_u32 v8, {t0}, 3, {t1}''')
    for sl in range(5):
        for n in range(4):
            e(f'ds_write_b128 v{2+n}, {v(PACC+16*sl+4*n,4)} offset:{sl*4096}')
    P.append(WAITLG()); e('s_barrier')
    for sl in range(5):
        for src in range(4):
            e(f'ds_read_b128 {v(PACC+16*sl+4*src,4)}, v{6 + (src >> 1)} offset:{(src & 1)*WOW + sl*4096}')
    for sl in range(5):
        b = PACC + 16*sl
        for r in range(4):
            e(f'v_add_f32 {v(b+r)}, {v(b+r)}, {v(b+4+r)}')
            e(f'v_add_f32 {v(b+8+r)}, {v(b+8+r)}, {v(b+12+r)}')
        for r in range(4): e(f'v_add_f32 {v(b+r)}, {v(b+r)}, {v(b+8+r)}')
        e(f'v_cvt_pk_bf16_f32 {v(b)}, {v(b)}, {v(b+1)}')
        e(f'v_cvt_pk_bf16_f32 {v(b+1)}, {v(b+2)}, {v(b+3)}')
        e(f's_mul_i32 {sT0}, {sMT[sl]}, {16*1152}\ns_lshl_b32 {sT1}, {sCL}, 7\ns_add_u32 {sT0}, {sT0}, {sT1}')
        e(f'buffer_store_dwordx2 {v(b,2)}, v8, {sOUT5 if sl == 3 else sOUT}, {sT0} offen')
    e('L_fin:')
    if cfg.stamps:
        P.append(DRAIN())
        stamp(15)
        e(f's_lshl_b32 {sT0}, {sPW}, 8\ns_add_u32 {sT0}, {sT0}, {ST0}')
        e(f'v_lshlrev_b32 {t0}, 2, {vLANE}')
        e(f'buffer_store_dword v255, {t0}, {sWS}, {sT0} offen')
    e('L_end:')
    e('s_endpgm')

HEADER = open('cdna_kernels/' + NAME + '.s.ref').read().split('; Override')[0] if True else ''

def build():
    prologue(); phase1(); attention(); phase3()
    out = finalize(P)
    body = text_of(out)
    src = HEADER + f'''; @launch grid=(256,1,1) block=(256,1,1) lds={LDS_BYTES}
.amdgcn_target "amdgcn-amd-amdhsa--gfx950"
.text
.globl {NAME}_kernel
.p2align 8
.type {NAME}_kernel,@function
{NAME}_kernel:
{body}
L_code_end:
.set CODE_PF_MAX, L_code_end - {NAME}_kernel - 1024 - 128
.section .rodata,"a"
.p2align 6
.amdhsa_kernel {NAME}_kernel
  .amdhsa_next_free_vgpr 512
  .amdhsa_next_free_sgpr 102
  .amdhsa_accum_offset 256
  .amdhsa_group_segment_fixed_size 0
  .amdhsa_kernarg_size 80
  .amdhsa_user_sgpr_count 2
  .amdhsa_user_sgpr_kernarg_segment_ptr 1
  .amdhsa_system_sgpr_workgroup_id_x 1
  .amdhsa_float_denorm_mode_32 3
.end_amdhsa_kernel
'''
    return src

if __name__ == '__main__':
    outp = sys.argv[1]
    for kv in sys.argv[2:]:
        k, val = kv.split('=')
        setattr(cfg, k, type(getattr(cfg, k))(int(val)))
    open(outp, 'w').write(build())
```

```python
import sys, math
from asmgen import *

NAME = "gated_mix__sliding_block__sliding_block__prompt"
class Cfg:
    stamps = False
    mapping = 1
    force_fallback = False
    pad_us = 0
cfg = Cfg()

NX, NW = 4, 7
XR = 0
WR = 65536
TB = WR + NW * 9216
TL = TB + 16384
DUMP = TB + 20480
GW = TB + 24576
ZB = GW + 2048
LDS_BYTES = 163840
WOW = 36864
FL0 = 4096
KV0 = 1 << 20
KVW = 11264
OM0 = 13 << 20
OL0 = 17 << 20
ST0 = 18 << 20
WS_BYTES = 20 << 20
TAGC_LO, TAGC_HI = 0x7F4A7C15, 0x9E3779B9
SPIN_MAX = 1 << 17

sX, sW, sWS, sWO, sOUT, sG, sH1, sH2 = 's[4:7]', 's[8:11]', 's[12:15]', 's[16:19]', 's[20:23]', 's[24:27]', 's[40:43]', 's[44:47]'
sWV, sRB, sBR, sHG = 's28', 's29', 's30', 's31'
sCX, sCW = 's32', 's33'
sCG = 's34'
sT0, sT1, sT2, sT3 = 's35', 's38', 's39', 's48'
sTAG_LO, sTAG_HI = 's36', 's37'
sXB, sWB = 's49', 's50'
sXM, sWM = 's51', 's52'
sPW = 's53'
sKV = ['s54', 's55', 's56']
sHB = [['s57', 's58', 's59'], ['s60', 's61', 's62']]
sFL = 's63'
sLOW = 's[64:65]'
sODD = 's[66:67]'
sOM, sOL = 's68', 's69'
sP, sGAM, sCL = 's70', 's71', 's72'
sSPIN = 's73'
sRET = 's[74:75]'
sST = 's[76:77]'
sST0 = 's78'
sA, sB_, sC, sD = 's80', 's81', 's82', 's83'
sMT = ['s84', 's85', 's86', 's87', 's88']
sO5 = 's[92:95]'
sOUT5 = 's[96:99]'
sSCALE = 's89'
sFB = 's90'

vLANE = 'v1'
vXd = ['v2', 'v3', 'v4', 'v5']
vWd = ['v6', 'v7', 'v8']
vXr = ['v9', 'v10']
vWr = 'v11'
vGb, vG = 'v12', 'v13'
vTw = ['v14', 'v15', 'v16', 'v17', 'v18']
vF1, vFL, vFV = 'v19', 'v20', 'v21'
vL16, vPV = 'v22', 'v23'
vOM, vOL = 'v24', 'v25'
vT = ['v26', 'v27', 'v28', 'v29', 'v30', 'v31']
ACC = 32
GACC = 72
WF = 80
GF = 120
TAGV = 128
POLL = 130
vPA = 'v132'
vZERO = 'v133'
GFAC = 134
BIASD = 140
BIASF = 156
Q1 = 172
QL = 188
PB = 204
OST = 220
SB = 32
OA = 64
XF = 0
LK1, LKL, LV = 144, 160, 164
HK1 = [196, 216]; HKL = [212, 232]
HV = [0, 32]

def v(b, n=1): return f'v{b}' if n == 1 else f'v[{b}:{b+n-1}]'
def a(b, n=1): return f'a{b}' if n == 1 else f'a[{b}:{b+n-1}]'

P = []
OOL = []
def e(text, tok=None):
    if isinstance(text, tuple): text, tok = text
    for line in text.strip().split('\n'):
        line = line.strip()
        if line: P.append(I(line, tok))
def stamp(i):
    if cfg.stamps:
        e(f's_memtime {sST}')
        e(f's_sub_u32 {sA}, s76, {sST0}')
        e(f'v_writelane_b32 v255, {sA}, {i}')

_lbl = [0]
def newlabel(p):
    _lbl[0] += 1
    return f'L_{p}_{_lbl[0]}'

def srd(dst, lo, hi, size):
    b = int(dst[2:dst.index(':')])
    e(f's_mov_b32 s{b}, {lo}\ns_mov_b32 s{b+1}, {hi}\ns_mov_b32 s{b+2}, {size}\ns_mov_b32 s{b+3}, 0x20000')

def prologue():
    e('s_cmp_ge_u32 s2, 256')
    e('s_cbranch_scc1 L_end')
    if cfg.stamps:
        e(f's_memtime {sST}')
        e(f's_memrealtime s[74:75]')
    if cfg.pad_us: e('s_memrealtime s[100:101]')
    e('s_load_dwordx16 s[64:79], s[0:1], 0' if False else 's_load_dwordx4 s[80:83], s[0:1], 0')
    e('s_load_dwordx2 s[84:85], s[0:1], 16')
    e('s_load_dwordx4 s[88:91], s[0:1], 32')
    e('s_load_dwordx4 s[92:95], s[0:1], 48')
    e('s_load_dwordx2 s[96:97], s[0:1], 72')
    e('s_getpc_b64 s[98:99]')
    e(f'v_and_b32 {vLANE}, 63, v0')
    e(f'v_lshlrev_b32 {vL16}, 4, {vLANE}')
    e(f'v_lshrrev_b32 {vT[0]}, 6, v0')
    e(f's_lshr_b32 {sT0}, s2, 3')
    e(f'v_readfirstlane_b32 {sWV}, {vT[0]}')
    if cfg.mapping == 1:
        e(f'''s_and_b32 {sBR}, s2, 1
        s_bfe_u32 {sT1}, s2, 0x20001
        s_lshl_b32 {sT1}, {sT1}, 2
        s_and_b32 {sT2}, {sT0}, 3
        s_add_u32 {sRB}, {sT1}, {sT2}
        s_lshr_b32 {sHG}, {sT0}, 2
        s_lshl_b32 {sT2}, {sT2}, 1
        s_add_u32 {sCX}, {sHG}, {sT2}''')
    else:
        e(f'''s_and_b32 {sBR}, s2, 1
        s_bfe_u32 {sT1}, s2, 0x10002
        s_lshl_b32 {sT1}, {sT1}, 3
        s_and_b32 {sT2}, {sT0}, 7
        s_add_u32 {sRB}, {sT1}, {sT2}
        s_bfe_u32 {sT1}, s2, 0x10001
        s_lshl_b32 {sT1}, {sT1}, 2
        s_lshr_b32 {sT3}, {sT0}, 3
        s_add_u32 {sHG}, {sT1}, {sT3}
        s_lshl_b32 {sT3}, {sT3}, 1
        s_add_u32 {sCX}, {sT2}, {sT3}''')
    e(f'''s_cmp_ge_u32 {sCX}, 9
    s_cselect_b32 {sT1}, 9, 0
    s_sub_u32 {sCX}, {sCX}, {sT1}
    s_mov_b32 {sCW}, {sCX}
    s_mov_b32 {sCG}, {sCX}''')
    e(f'''s_and_b32 {sT1}, {sWV}, 1
    s_lshl_b32 {sT1}, {sT1}, 5
    s_add_u32 {sT1}, {sT1}, {sT0}
    s_lshl_b32 {sT1}, {sT1}, 10
    s_min_u32 {sT1}, {sT1}, CODE_PF_MAX
    v_add_u32 {vT[1]}, {sT1}, {vL16}
    global_load_dwordx4 v[224:227], {vT[1]}, s[98:99]''')
    t0, t1, t2, t3, t4, t5 = vT
    e(f'''v_lshrrev_b32 {t0}, 3, {vLANE}
    v_and_b32 {t1}, 7, {vLANE}
    v_lshrrev_b32 {t2}, 1, {t0}
    v_xor_b32 {t1}, {t1}, {t2}
    v_mul_u32_u24 {t0}, 1152, {t0}
    v_lshl_add_u32 {vXd[0]}, {t1}, 4, {t0}
    v_xor_b32 {t1}, 4, {t1}
    v_lshl_add_u32 {vXd[1]}, {t1}, 4, {t0}
    v_add_u32 {vXd[1]}, {8*1152-1024}, {vXd[1]}
    v_add_u32 {vXd[2]}, {16*1152-2048}, {vXd[0]}
    v_add_u32 {vXd[3]}, {16*1152-2048}, {vXd[1]}''')
    for i, F in enumerate((0, 64, 80)):
        e(f'''v_add_u32 {t0}, {F}, {vLANE}
        v_mul_u32_u24 {t1}, 7282, {t0}
        v_lshrrev_b32 {t1}, 16, {t1}
        v_mul_u32_u24 {t2}, 9, {t1}
        v_sub_u32 {t0}, {t0}, {t2}
        v_and_b32 {t2}, 1, {t1}
        v_lshlrev_b32 {t2}, 4, {t2}
        v_and_b32 {t3}, 8, {t1}
        v_bfe_u32 {t4}, {t1}, 1, 2
        v_add3_u32 {t2}, {t2}, {t3}, {t4}
        v_mul_u32_u24 {t2}, 3456, {t2}
        v_lshl_add_u32 {vWd[i]}, {t0}, 4, {t2}''')
        if F: e(f'v_subrev_u32 {vWd[i]}, {16*F}, {vWd[i]}')
    e(f'''s_lshl_b32 {sT1}, {sRB}, 2
    s_add_u32 {sT1}, {sT1}, {sWV}
    s_mul_i32 {sXB}, {sT1}, {32*1152}
    s_lshr_b32 {sT1}, {sWV}, 1
    s_lshl_b32 {sT1}, {sT1}, 3
    s_and_b32 {sT2}, {sWV}, 1
    s_add_u32 {sT1}, {sT1}, {sT2}
    s_mul_i32 {sWB}, {sT1}, {4*3456}
    s_mul_i32 {sT1}, {sHG}, 144
    s_add_u32 {sWB}, {sWB}, {sT1}
    s_lshl_b32 {sXM}, {sWV}, 14
    s_mul_i32 {sWM}, {sWV}, 2304
    s_add_u32 {sWM}, {sWM}, {WR}''')
    srd(sX, 's80', 's81', 2048*1152)
    e(f's_cmp_eq_u32 {sBR}, 0')
    e('s_cselect_b32 s8, s82, s88\ns_cselect_b32 s9, s83, s89')
    e(f's_mov_b32 s10, {576*3456}\ns_mov_b32 s11, 0x20000')
    if cfg.stamps: e(f's_mov_b32 {sST0}, s76\nv_mov_b32 v255, 0\nv_writelane_b32 v255, s74, 16')

def x_dma(slot):
    e(f's_lshl_b32 {sT0}, {sCX}, 7\ns_add_u32 {sT0}, {sT0}, {sXB}')
    e(f's_add_u32 m0, {sXM}, {slot*4096}')
    for i in range(4):
        e(f'buffer_load_dwordx4 {vXd[i]}, {sX}, {sT0} offen offset:{1024*i} lds', tok=('X', x_dma.n))
    e(f's_add_u32 {sCX}, {sCX}, 1\ns_cmp_eq_u32 {sCX}, 9\ns_cselect_b32 {sCX}, 0, {sCX}')
    x_dma.n += 1
x_dma.n = 0
SEG = [1]*9 + [2]*9 + [0]*9
def w_dma(j):
    e(f's_mul_i32 {sT1}, {sCW}, {64*3456}\ns_add_u32 {sT1}, {sT1}, {sWB}')
    if SEG[j]: e(f's_add_u32 {sT1}, {sT1}, {SEG[j]*1152}')
    e(f's_add_u32 m0, {sWM}, {(j % NW)*9216}')
    for i, F in enumerate((0, 64, 80)):
        e(f'buffer_load_dwordx4 {vWd[i]}, {sW}, {sT1} offen offset:{16*F} lds', tok=('W', j))
    e(f's_add_u32 {sCW}, {sCW}, 1\ns_cmp_eq_u32 {sCW}, 9\ns_cselect_b32 {sCW}, 0, {sCW}')

def setup_rest():
    t0, t1, t2, t3, t4, t5 = vT
    srd(sOUT, 's94', 's95', 2048*1152)
    e(f's_cmp_lt_u32 {sWV}, 2')
    e('s_cselect_b32 s16, s84, s90\ns_cselect_b32 s17, s85, s91')
    e(f's_mov_b32 s18, {576*1152}\ns_mov_b32 s19, 0x20000')
    for d, s_ in ((1, 40), (2, 44)):
        e(f's_mov_b32 s{s_}, s96\ns_mov_b32 s{s_+1}, s97\ns_cmp_ge_u32 {sRB}, {d}\ns_cselect_b32 s{s_+2}, {WS_BYTES}, 0\ns_mov_b32 s{s_+3}, 0x20000')
    e(f'''v_and_b32 {t0}, 15, {vLANE}
    v_lshrrev_b32 {t1}, 4, {vLANE}
    v_lshrrev_b32 {t2}, 1, {t0}
    v_xor_b32 {t2}, {t1}, {t2}
    v_lshlrev_b32 {t3}, 7, {t0}
    v_add_u32 {t3}, {sXM}, {t3}
    v_lshl_add_u32 {vXr[0]}, {t2}, 4, {t3}
    v_xor_b32 {vXr[1]}, 64, {vXr[0]}
    v_lshlrev_b32 {vGb}, 4, {t1}
    v_add_u32 {vGb}, {GW}, {vGb}''')
    e(f'''v_and_b32 {t2}, 1, {t1}
    v_lshlrev_b32 {t2}, 3, {t2}
    v_bfe_u32 {t3}, {vLANE}, 2, 2
    v_lshl_add_u32 {t2}, {t3}, 1, {t2}
    v_lshrrev_b32 {t4}, 1, {t1}
    v_add_u32 {t2}, {t2}, {t4}
    v_mul_u32_u24 {t2}, 144, {t2}
    v_and_b32 {t4}, 3, {vLANE}
    v_lshl_add_u32 {vWr}, {t4}, 3, {t2}
    v_add_u32 {vWr}, {WR}, {vWr}''')
    e(f'''s_lshl_b32 {sT0}, {sWV}, 10
    s_add_u32 {sT0}, {sT0}, {TB}
    v_lshlrev_b32 {t2}, 4, {t0}
    v_add_u32 {t2}, {sT0}, {t2}
    v_lshlrev_b32 {t1}, 4, {t1}''')
    for n in range(5):
        offs = []
        for gq in range(4):
            G = 4*n + gq
            if G >= 18: o = 20480
            else:
                p, g9 = divmod(G, 9)
                if g9 == 4: o = 16384 + p*512
                else:
                    head = 2*p + (g9 > 4); mi = g9 if g9 < 4 else g9-5
                    o = head*4096 + (mi >> 1)*512 + (mi & 1)*8
            offs.append(o)
        e(f'''s_mov_b32 {sA}, {offs[0] | offs[1] << 16}
        s_mov_b32 {sB_}, {offs[2] | offs[3] << 16}
        v_lshrrev_b64 v[30:31], {t1}, s[80:81]
        v_and_b32 v30, 0xffff, v30
        v_add_u32 {vTw[n]}, v30, {t2}''')
    e(f's_mov_b32 s64, -1\ns_mov_b32 s65, 0')
    e(f's_bitcmp1_b32 {sWV}, 0\ns_cselect_b32 s66, -1, 0\ns_mov_b32 s67, s66')
    e(f'''s_lshl_b32 {sT0}, {sWV}, 12
    s_add_u32 {sT0}, {sT0}, {TB}
    v_add_u32 {vF1}, {sT0}, {vL16}
    s_lshr_b32 {sT1}, {sWV}, 1
    s_lshl_b32 {sT1}, {sT1}, 9
    s_add_u32 {sT1}, {sT1}, {TL}
    s_and_b32 {sT2}, {sWV}, 1
    s_lshl_b32 {sT2}, {sT2}, 2
    v_and_b32 {t0}, 31, {vLANE}
    v_lshlrev_b32 {t0}, 4, {t0}
    v_add_u32 {t0}, {sT1}, {t0}
    v_mov_b32 {t1}, {sT2}
    v_cndmask_b32 {t1}, 8, {t1}, {sLOW}
    v_add_u32 {vFL}, {t0}, {t1}''')
    e(f'''v_lshrrev_b32 {t0}, 5, {vLANE}
    v_bfe_u32 {t1}, {vLANE}, 2, 2
    v_lshl_add_u32 {t0}, {t0}, 2, {t1}
    v_lshlrev_b32 {t0}, 4, {t0}
    v_bfe_u32 {t1}, {vLANE}, 1, 1
    v_lshlrev_b32 {t1}, 9, {t1}
    v_and_b32 {t2}, 1, {vLANE}
    v_lshl_add_u32 {t1}, {t2}, 3, {t1}
    v_add_u32 {t1}, {sT0}, {t1}
    v_and_b32 {t2}, 3, {vLANE}
    v_min_u32 {t2}, 1, {t2}
    v_lshlrev_b32 {t2}, 3, {t2}
    v_add_u32 {t2}, {sT1}, {t2}
    v_and_b32 {t3}, 16, {vLANE}
    v_cmp_eq_u32 vcc, 0, {t3}
    v_cndmask_b32 {t1}, {t2}, {t1}, vcc
    v_add_u32 {vFV}, {t0}, {t1}''')
    e(f'''v_lshlrev_b32 {t0}, 4, v0
    v_add_u32 {t0}, {TL+8}, {t0}
    v_mov_b32 v30, 0x3f803f80
    v_mov_b32 v31, 0x3f803f80
    ''')
    e(f'ds_write_b64 {t0}, v[30:31]', tok='T')
    e(f'''v_and_b32 {t0}, 31, {vLANE}
    v_min_u32 {t0}, 23, {t0}
    v_lshrrev_b32 {t1}, 5, {vLANE}
    v_mul_u32_u24 {t2}, 24, {t1}
    v_add_lshl_u32 {vPV}, {t0}, {t2}, 4
    v_bfe_u32 {t0}, {vLANE}, 4, 1
    v_lshlrev_b32 {t0}, 15, {t0}
    v_lshl_add_u32 {t0}, {t1}, 8, {t0}
    v_and_b32 {t2}, 15, {vLANE}
    v_lshl_add_u32 {vOM}, {t2}, 4, {t0}
    v_lshlrev_b32 {t0}, 2, {vLANE}
    v_mov_b32 {t2}, 0x7f000000
    v_cndmask_b32 {vOL}, {t2}, {t0}, {sLOW}''')
    e(f'''s_lshl_b32 {sT0}, {sRB}, 1
    s_add_u32 {sT0}, {sT0}, {sBR}
    s_lshl_b32 {sT0}, {sT0}, 3
    s_add_u32 {sT0}, {sT0}, {sHG}
    s_lshl_b32 {sT0}, {sT0}, 2
    s_add_u32 {sPW}, {sT0}, {sWV}
    s_mul_i32 {sKV[0]}, {sPW}, {KVW}
    s_add_u32 {sKV[0]}, {sKV[0]}, {KV0}
    s_add_u32 {sKV[1]}, {sKV[0]}, 4096
    s_add_u32 {sKV[2]}, {sKV[0]}, 8192
    s_lshl_b32 {sFL}, {sPW}, 7
    s_add_u32 {sFL}, {sFL}, {FL0}''')
    for d in (1, 2):
        e(f's_cmp_ge_u32 {sRB}, {d}\ns_cselect_b32 {sT0}, {64*d*KVW}, 0')
        for k in range(3): e(f's_sub_u32 {sHB[d-1][k]}, {sKV[k]}, {sT0}')
    e(f'''s_lshl_b32 {sT0}, {sBR}, 3
    s_add_u32 {sT0}, {sT0}, {sHG}
    s_lshl_b32 {sT0}, {sT0}, 2
    s_add_u32 {sT0}, {sT0}, {sWV}
    s_lshl_b32 {sOM}, {sT0}, 9
    s_lshl_b32 {sT1}, {sRB}, 18
    s_add_u32 {sOM}, {sOM}, {sT1}
    s_add_u32 {sOM}, {sOM}, {OM0}
    s_lshl_b32 {sOL}, {sT0}, 7
    s_lshl_b32 {sT1}, {sRB}, 15
    s_add_u32 {sOL}, {sOL}, {sT1}
    s_add_u32 {sOL}, {sOL}, {OL0}''')
    e(f'''v_and_b32 {t0}, 31, {vLANE}
    v_lshrrev_b32 {t1}, 5, {vLANE}
    v_lshlrev_b32 {t1}, 2, {t1}
    v_sub_u32 {t0}, {t0}, {t1}
    s_mov_b32 {sA}, 0xff800000''')
    for r in range(16):
        c = 8*(r >> 2) + (r & 3)
        e(f'''v_subrev_u32 {t1}, {c}, {t0}
        v_ashrrev_i32 {t1}, 31, {t1}
        v_and_b32 {v(BIASD+r)}, {sA}, {t1}
        v_xor_b32 {v(BIASF+r)}, {sA}, {v(BIASD+r)}''')
    for i in range(4):
        e(f'v_mov_b32 {v(QL+4*i+1)}, 0\nv_mov_b32 {v(QL+4*i+2)}, 0')
    sc = math.log2(math.e) / math.sqrt(18.0)
    import struct
    e(f's_mov_b32 {sSCALE}, {struct.unpack("<I", struct.pack("<f", sc))[0]:#x}')
    e(f'v_add_u32 {v(TAGV)}, {TAGC_LO:#x}, {v(TAGV)}\nv_add_u32 {v(TAGV+1)}, {TAGC_HI:#x}, {v(TAGV+1)}')

def acc(m, n): return ACC + (m*5 + n)*4
def xf(c, ks, m): return XF + ((c*2 + ks)*2 + m)*4

def w_reads(j, ks):
    L = []
    buf = WF + ((2*j + ks) & 1)*20
    for n in range(5):
        for rd in range(2):
            L.append(f'ds_read_b64_tr_b16 {v(buf+4*n+2*rd, 2)}, {vWr} offset:{(j % NW)*9216 + ks*4608 + rd*2304 + n*32}')
    return L
def mfmas(j, ks):
    L = []
    buf = WF + ((2*j + ks) & 1)*20
    first = (j % 9 == 0 and ks == 0)
    for n in range(5):
        for m in range(2):
            c = '0' if first else v(acc(m, n), 4)
            L.append(f'v_mfma_f32_16x16x32_bf16 {v(acc(m,n),4)}, {v(buf+4*n,4)}, {a(xf(j % 9, ks, m),4)}, {c}')
    if j < 9:
        for m in range(2):
            c = '0' if first else v(GACC+4*m, 4)
            L.append(f'v_mfma_f32_16x16x32_bf16 {v(GACC+4*m,4)}, {v(GF+4*ks,4)}, {a(xf(j, ks, m),4)}, {c}')
    return L
def interleave(A, B):
    out = []
    nb = len(B); na = len(A); k = 0
    for i, x in enumerate(A):
        out.append(x)
        want = (i + 1) * nb // na if na else nb
        while k < want:
            out.append(B[k]); k += 1
    out += B[k:]
    return out

def flag_store(stage):
    e(f's_add_u32 {sT0}, {sFL}, {stage*1024*128}')
    e(f'buffer_store_dwordx2 {v(TAGV,2)}, {vZERO}, {sWS}, {sT0} offen sc1')

def stage_epilogue(st):
    for n in range(5):
        for m in range(2):
            b = acc(m, n)
            if st == 2:
                for r in range(4): e(f'v_mul_f32 {v(b+r)}, {sSCALE}, {v(b+r)}')
            e(f'v_cvt_pk_bf16_f32 {v(b)}, {v(b)}, {v(b+1)}')
            e(f'v_cvt_pk_bf16_f32 {v(b+1)}, {v(b+2)}, {v(b+3)}')
            e(f'ds_write_b64 {vTw[n]}, {v(b,2)} offset:{m*256}', tok='T')
    if st == 0:
        t0, t1, t2 = vT[0], vT[1], vT[2]
        e(f'''v_and_b32 {t2}, 15, {vLANE}
        v_lshlrev_b32 {t2}, 2, {t2}
        s_lshl_b32 {sT0}, {sWV}, 7
        s_add_u32 {sT0}, {sT0}, {ZB}
        v_add_u32 {t2}, {sT0}, {t2}
        s_cmp_eq_u32 {sBR}, 0
        s_cselect_b64 vcc, -1, 0''')
        for m in range(2):
            z = v(GACC+4*m)
            e(f'''v_cvt_pk_bf16_f32 {z}, 0, {z}
            v_mul_f32 {z}, 0xbfb8aa3b, {z}
            v_exp_f32 {z}, {z}
            v_add_f32 {z}, 1.0, {z}
            v_rcp_f32 {z}, {z}
            v_cvt_pk_bf16_f32 {z}, 0, {z}
            v_sub_f32 {t0}, 1.0, {z}
            v_cvt_pk_bf16_f32 {t0}, 0, {t0}
            v_cndmask_b32 {z}, {t0}, {z}, vcc''')
            e(f'ds_write_b32 {t2}, {z} offset:{m*64}', tok='T')

def frag_reads(st):
    if st == 0:
        for t in range(4): e(f'ds_read_b128 {a(LK1+4*t,4)}, {vF1} offset:{t*1024}')
        e(f'ds_read2st64_b32 {a(LKL,2)}, {vFL} offset0:0 offset1:4')
        e(f'ds_read2st64_b32 {a(LKL+2,2)}, {vFL} offset0:8 offset1:12')
        e(f'''v_and_b32 {vT[0]}, 31, {vLANE}
        v_lshlrev_b32 {vT[0]}, 2, {vT[0]}
        v_add_u32 {vT[0]}, {ZB}, {vT[0]}''')
        for i in range(4): e(f'ds_read_b32 {v(GFAC+i)}, {vT[0]} offset:{i*128}')
        for t in range(4): e(f'buffer_store_dwordx4 {a(LK1+4*t,4)}, {vL16}, {sWS}, {sKV[0]} offen offset:{t*1024} sc1', tok='KP')
        e(f'buffer_store_dwordx4 {a(LKL,4)}, {vL16}, {sWS}, {sKV[1]} offen sc1', tok='KP')
    elif st == 1:
        for t in range(4):
            for j in range(2):
                for q in range(2):
                    e(f'ds_read_b64_tr_b16 {a(LV+8*t+4*j+2*q,2)}, {vFV} offset:{t*1024 + (16*j+8*q)*16}')
        for f in range(8):
            so, im = (sKV[1], 1024+768*f) if f < 4 else (sKV[2], 768*(f-4))
            e(f'buffer_store_dwordx4 {a(LV+4*f,4)}, {vPV}, {sWS}, {so} offen offset:{im} sc1', tok='VP')
    else:
        for t in range(4): e(f'ds_read_b128 {v(Q1+4*t,4)}, {vF1} offset:{t*1024}')
        e(f'ds_read2st64_b32 v[26:27], {vFL} offset0:0 offset1:4')
        e(f'ds_read2st64_b32 v[28:29], {vFL} offset0:8 offset1:12')

def phase1():
    for c in range(NX):
        x_dma(c); w_dma(c)
        if c == 0:
            srd(sG, 's92', 's93', 1152)
            e(f's_mov_b32 m0, {GW}')
            e(f'buffer_load_dwordx4 {vL16}, {sG}, 0 offen lds', tok='G')
            e(f'buffer_load_dwordx4 {vL16}, {sG}, 0 offen offset:1024 lds', tok='G')
            srd(sWS, 's96', 's97', WS_BYTES)
            e(f'v_mov_b32 {vZERO}, 0')
            e(f'buffer_load_dwordx2 {v(TAGV,2)}, {vZERO}, {sWS}, 0 offen sc1', tok='G')
    for j in range(NX, NW): w_dma(j)
    setup_rest()
    stamp(1)
    pend = None
    for j in range(27):
        toks = [('W', j)]
        if j < 9: toks.append(('X', j))
        if j == 0: toks.append('G')
        P.append(WAITVM(*toks))
        P.append(WAITLG('T', 'XR'))
        e('s_barrier')
        if j == 1: stamp(2)
        if j >= 2 and j - 2 + NW < 27: w_dma(j - 2 + NW)
        if j >= 1 and j - 1 + NX < 9: x_dma((j - 1) % NX)
        if j in (10, 19):
            frag_reads((j - 10) // 9)
        if j == 15: P.append(WAITVM('KP')); flag_store(0)
        if j == 24: P.append(WAITVM('VP')); flag_store(1)
        r0 = w_reads(j, 0)
        if j < 9:
            e(f's_lshl_b32 {sT0}, {sCG}, 7\nv_add_u32 {vG}, {sT0}, {vGb}')
            e(f's_add_u32 {sCG}, {sCG}, 1\ns_cmp_eq_u32 {sCG}, 9\ns_cselect_b32 {sCG}, 0, {sCG}')
            xr = [(f'ds_read_b128 {a(xf(j, ks, m),4)}, {vXr[ks]} offset:{(j % NX)*4096 + m*2048}', 'XR') for ks in range(2) for m in range(2)]
            r0 = xr[:2] + [f'ds_read_b128 {v(GF,4)}, {vG}'] + r0 + xr[2:]
        if pend is not None:
            for x in interleave(pend, r0): e(x)
        else:
            for x in r0: e(x)
        if j in (9, 18):
            stamp(3 + j // 9 - 1)
            stage_epilogue(j // 9 - 1)
        r1 = w_reads(j, 1)
        if j < 9: r1 = r1 + [f'ds_read_b128 {v(GF+4,4)}, {vG} offset:64']
        for x in interleave(mfmas(j, 0), r1): e(x)
        pend = mfmas(j, 1)
    for x in pend: e(x)
    stamp(5)
    stage_epilogue(2)
    P.append(WAITLG()); e('s_barrier')
    frag_reads(2)
    P.append(WAITLG()); e('s_barrier')
    stamp(6)

def poll(addr_setup, mask_lanes, label):
    L, D = newlabel(label), newlabel(label + 'd')
    P.append(DRAIN())
    e(f's_mov_b32 {sSPIN}, {SPIN_MAX}')
    e(f'{L}:')
    e(f'buffer_load_dwordx2 {v(POLL,2)}, {vPA}, {sWS}, 0 offen sc1')
    e(f's_sub_u32 {sSPIN}, {sSPIN}, 1')
    e(f's_cmp_eq_u32 {sSPIN}, 0')
    e(f's_cbranch_scc1 {D}')
    e(f'v_cmp_ne_u64 vcc, {v(POLL,2)}, {v(TAGV,2)}')
    e(f's_cbranch_vccnz {L}')
    e(f'{D}:')
    P.append(DRAIN())

def wo_dma():
    t0, t1, t2 = vT[0], vT[1], vT[2]
    e(f'''v_lshrrev_b32 {t0}, 3, {vLANE}
    v_and_b32 {t1}, 7, {vLANE}
    v_and_b32 {t2}, 6, {t0}
    v_xor_b32 {t1}, {t1}, {t2}
    v_mul_u32_u24 {t0}, 1152, {t0}
    v_lshl_add_u32 {vWd[0]}, {t1}, 4, {t0}
    s_and_b32 {sT0}, {sWV}, 1
    s_mul_i32 {sT0}, {sT0}, {288*1152}
    s_lshl_b32 {sT1}, {sCL}, 7
    s_add_u32 {sT0}, {sT0}, {sT1}
    s_mul_i32 {sWM}, {sWV}, {WOW}''')
    for i in range(36):
        if i % 4 == 0: e(f's_add_u32 m0, {sWM}, {i*1024}')
        e(f's_add_u32 {sT1}, {sT0}, {8*i*1152 - 1024*(i % 4)}')
        e(f'buffer_load_dwordx4 {vWd[0]}, {sWO}, {sT1} offen offset:{1024*(i % 4)} lds', tok='WO')

def p3_decode():
    e(f'''s_and_b32 {sT0}, s2, 7
    s_lshl_b32 {sT0}, {sT0}, 5
    s_lshr_b32 {sT1}, s2, 3
    s_add_u32 {sP}, {sT0}, {sT1}
    s_mul_i32 {sGAM}, {sP}, 7282
    s_lshr_b32 {sGAM}, {sGAM}, 16
    s_mul_i32 {sT0}, {sGAM}, 9
    s_sub_u32 {sCL}, {sP}, {sT0}''')

def kfr(t):
    if t >= 0: k1, kl, vv, tt = LK1, LKL, LV, t
    elif t >= -4: k1, kl, vv, tt = HK1[0], HKL[0], HV[0], t + 4
    else: k1, kl, vv, tt = HK1[1], HKL[1], HV[1], t + 8
    return a(k1+4*tt, 4), a(kl + (tt & 2), 2), tt & 1, a(vv+8*tt, 4), a(vv+8*tt+4, 4)

def qk(i, t, S):
    k1, kl, par, _, _ = kfr(t)
    c = v(BIASD, 16) if t == i else (v(BIASF, 16) if t == i - 8 else '0')
    return [f'v_mfma_f32_32x32x16_bf16 {v(S,16)}, {k1}, {v(Q1+4*i,4)}, {c}',
            f'v_mfma_f32_32x32x8_bf16 {v(S,16)}, {kl}, {v(QL+4*i+2*par,2)}, {v(S,16)}']
def pv(i, t, Pb, first):
    _, _, _, v0_, v1_ = kfr(t)
    O = v(OA+16*i, 16)
    return [f'v_mfma_f32_32x32x16_bf16 {O}, {v0_}, {v(Pb,4)}, {"0" if first else O}',
            f'v_mfma_f32_32x32x16_bf16 {O}, {v1_}, {v(Pb+4,4)}, {O}']
def softmax_ops(S, Pb):
    G = []
    for g in range(4):
        L = [f'v_exp_f32 {v(S+4*g+k)}, {v(S+4*g+k)}' for k in range(4)]
        L += [f'v_cvt_pk_bf16_f32 {v(Pb+2*g)}, {v(S+4*g)}, {v(S+4*g+1)}', f'v_cvt_pk_bf16_f32 {v(Pb+2*g+1)}, {v(S+4*g+2)}, {v(S+4*g+3)}']
        G.append(L)
    return G

def standin():
    for i in range(4):
        e(f'v_cndmask_b32 {v(QL+4*i)}, 0, v{26+i}, {sLOW}')
        e(f'v_mov_b32 {v(QL+4*i+3)}, {v(QL+4*i)}')
    for i in range(4):
        for x in qk(i, i, OA+16*i): e(x)
    for i in range(4):
        S = OA + 16*i
        e(f'v_max3_f32 {v(S)}, {v(S)}, {v(S+1)}, {v(S+2)}')
        for k in range(3, 15, 2): e(f'v_max3_f32 {v(S)}, {v(S)}, {v(S+k)}, {v(S+k+1)}')
        e(f'v_max_f32 {v(S)}, {v(S)}, {v(S+15)}')
        e(f'v_mov_b32 {v(S+1)}, {v(S)}')
    for i in range(4):
        S = OA + 16*i
        e(f'v_permlane32_swap_b32 {v(S)}, {v(S+1)}')
    for i in range(4):
        S = OA + 16*i
        e(f'v_max_f32 {v(S)}, {v(S)}, {v(S+1)}')
        e(f'v_cvt_pk_bf16_f32 {v(S)}, -{v(S)}, 0')
        e(f'v_cndmask_b32 {v(QL+4*i)}, {v(S)}, {v(QL+4*i)}, {sLOW}')
        e(f'v_mov_b32 {v(QL+4*i+3)}, {v(QL+4*i)}')

def run_steps(steps, started, hooks=None):
    n = len(steps)
    hooks = hooks or {}
    for x in qk(*steps[0], SB): e(x)
    for k in range(n + 1):
        M = []
        if k + 1 < n: M += qk(*steps[k+1], SB + 16*((k+1) & 1))
        if k >= 1:
            i, t = steps[k-1]
            M += pv(i, t, PB + 8*((k-1) & 1), i not in started); started.add(i)
        G = softmax_ops(SB + 16*(k & 1), PB + 8*(k & 1)) if k < n else [[], [], [], []]
        for g in range(4):
            if g < len(M): e(M[g])
            for x in G[g]: e(x)
        if k in hooks: hooks[k]()

def o_epilogue(i):
    O = OA + 16*i
    t0, t1, t2 = vT[0], vT[1], vT[2]
    FBL, RET = f'L_fb_{i}', f'L_fbret_{i}'
    e(f'{RET}:')
    e(f'v_rcp_f32 {t0}, {v(O+12)}')
    e(f'v_cndmask_b32 {v(O+8)}, {v(O+8)}, {v(O+10)}, {sODD}')
    e(f'v_cndmask_b32 {v(O+9)}, {v(O+9)}, {v(O+11)}, {sODD}')
    e(f'v_mul_f32 {t0}, {t0}, {v(GFAC+i)}')
    for r in range(10): e(f'v_mul_f32 {v(O+r)}, {t0}, {v(O+r)}')
    for r in range(5): e(f'v_cvt_pk_bf16_f32 {v(OST+r)}, {v(O+2*r)}, {v(O+2*r+1)}')
    e(f's_add_u32 {sT0}, {sOM}, {i*65536}\ns_add_u32 {sT1}, {sOL}, {i*8192}')
    e(f'buffer_store_dwordx4 {v(OST,4)}, {vOM}, {sWS}, {sT0} offen sc1', tok=('O', i))
    e(f'buffer_store_dword {v(OST+4)}, {vOL}, {sWS}, {sT1} offen sc1', tok=('O', i))

def attention():
    standin()
    stamp(7)
    p3_decode()
    e(f's_min_u32 {sCL}, {sCL}, 8')
    wo_dma()
    started = set()
    local = [(i, t) for i in (3, 2, 1, 0) for t in range(i, -1, -1)]
    run_steps(local, started)
    stamp(8)
    t0, t1, t2 = vT[0], vT[1], vT[2]
    e(f'''s_cmp_ge_u32 {sRB}, 1
    s_cselect_b32 {sA}, {64*128}, 0
    s_cmp_ge_u32 {sRB}, 2
    s_cselect_b32 {sB_}, {128*128}, 0
    s_sub_u32 {sA}, {sFL}, {sA}
    s_sub_u32 {sB_}, {sFL}, {sB_}
    v_mov_b32 {t0}, {sA}
    v_mov_b32 {t1}, {sB_}
    v_cndmask_b32 {t0}, {t1}, {t0}, {sLOW}
    v_and_b32 {t1}, 1, {vLANE}
    v_lshlrev_b32 {t1}, 17, {t1}
    v_add_u32 {vPA}, {t0}, {t1}''')
    poll(None, None, 'kv')
    stamp(9)
    for d, srd_ in ((0, sH1), (1, sH2)):
        for t in range(4): e(f'buffer_load_dwordx4 {a(HK1[d]+4*t,4)}, {vL16}, {srd_}, {sHB[d][0]} offen offset:{t*1024} sc1')
        e(f'buffer_load_dwordx4 {a(HKL[d],4)}, {vL16}, {srd_}, {sHB[d][1]} offen sc1')
        for f in range(8):
            so, im = (sHB[d][1], 1024+768*f) if f < 4 else (sHB[d][2], 768*(f-4))
            e(f'buffer_load_dwordx4 {a(HV[d]+4*f,4)}, {vPV}, {srd_}, {so} offen offset:{im} sc1')
    halo = [(i, t) for i in (3, 2, 1, 0) for t in range(-1, i - 9, -1)]
    hooks = {}
    ends = {}
    for k, (i, t) in enumerate(halo): ends[i] = k
    def mk(i):
        def h():
            o_epilogue(i)
        return h
    def mkf(i):
        def h():
            P.append(WAITVM(('O', i))); flag_store(2 + i)
        return h
    for i in (3, 2, 1):
        hooks[ends[i] + 2] = mk(i)
        hooks[ends[i] + 6] = mkf(i)
    run_steps(halo, started, hooks)
    stamp(10)
    o_epilogue(0)
    P.append(WAITVM(('O', 0))); flag_store(2)
    stamp(11)

WOF = 0
OF = 144
PACC = 32
def phase3():
    t0, t1, t2, t3, t4, t5 = vT
    LS = newlabel('noep')
    e(f's_cmp_lg_u32 {sPW}, 0')
    e(f's_cbranch_scc1 {LS}')
    for k in range(4):
        e(f'v_lshlrev_b32 {vPA}, 9, {vLANE}\nv_add_u32 {vPA}, {FL0 + k*64*512}, {vPA}')
        poll(None, None, 'ep')
    e(f'buffer_store_dwordx2 {v(TAGV,2)}, {vZERO}, {sWS}, 0 offen sc1')
    e(f'{LS}:')
    e(f's_cmp_ge_u32 {sP}, 252')
    e('s_cbranch_scc1 L_fin')
    e(f'''s_lshr_b32 {sT0}, {sGAM}, 1
    s_add_u32 {sT0}, {sT0}, 2
    s_lshl_b32 {sT0}, {sT0}, 3
    s_and_b32 {sT1}, {sGAM}, 1
    s_add_u32 {sMT[4]}, {sT0}, {sT1}
    s_add_u32 {sMT[2]}, {sMT[4]}, 2
    s_add_u32 {sMT[1]}, {sMT[4]}, 4
    s_add_u32 {sMT[0]}, {sMT[4]}, 6
    s_and_b32 {sMT[3]}, {sGAM}, 15
    s_cmp_lt_u32 {sGAM}, 16
    s_mov_b32 s92, s12
    s_mov_b32 s93, s13
    s_cselect_b32 s94, {WS_BYTES}, 0
    s_mov_b32 s95, 0x20000
    s_mov_b32 s96, s20
    s_mov_b32 s97, s21
    s_cselect_b32 s98, {2048*1152}, 0
    s_mov_b32 s99, 0x20000
    s_cselect_b32 {sMT[3]}, {sMT[3]}, {sMT[2]}''')
    e(f'''v_lshrrev_b32 {t0}, 4, {vLANE}
    v_bfe_u32 {t1}, {vLANE}, 2, 2
    v_and_b32 {t2}, 3, {vLANE}
    v_lshlrev_b32 {t2}, 3, {t2}
    v_add_u32 {t2}, {sWM}, {t2}
    v_lshrrev_b32 {t3}, 1, {t0}
    v_and_b32 {t4}, 1, {t0}
    v_mul_u32_u24 {t5}, 20, {t3}
    v_lshl_add_u32 {t5}, {t4}, 2, {t5}
    v_add_u32 {t5}, {t5}, {t1}
    v_lshl_add_u32 v2, {t5}, 7, {t2}
    v_xor_b32 {t3}, {t3}, {t4}
    v_lshrrev_b32 {t4}, 1, {t1}
    v_lshl_add_u32 {t3}, {t3}, 1, {t4}
    v_lshl_add_u32 v2, {t3}, 5, v2
    v_xor_b32 v3, 32, v2
    v_xor_b32 v4, 64, v2
    v_xor_b32 v5, 96, v2
    v_mul_u32_u24 {t5}, 72, {t0}
    v_add3_u32 {t5}, {t5}, {t1}, 16
    v_lshl_add_u32 v6, {t5}, 7, {t2}
    v_lshl_add_u32 v6, {t4}, 5, v6
    v_xor_b32 v7, 32, v6
    v_xor_b32 v8, 64, v6
    v_xor_b32 v9, 96, v6''')
    P.append(WAITVM('WO'))
    for s in range(8):
        for n in range(4):
            for rd in range(2):
                e(f'ds_read_b64_tr_b16 {a(WOF+(s*4+n)*4+2*rd,2)}, v{2 + (n ^ (2*(s & 1)))} offset:{(36*s+8*rd)*128}')
    for n in range(4):
        for rd in range(2):
            e(f'ds_read_b64_tr_b16 {a(WOF+(32+n)*4+2*rd,2)}, v{6 + (n ^ (2*rd))} offset:{rd*36*128}')
    e(f'''v_lshrrev_b32 {t0}, 4, {vLANE}
    v_and_b32 {t1}, 15, {vLANE}
    v_lshlrev_b32 {t1}, 2, {t1}
    v_lshl_add_u32 v10, {t0}, 9, {t1}
    v_and_b32 v11, 15, {vLANE}
    v_lshlrev_b32 v11, 7, v11''')
    stamp(12)
    for sl in range(5):
        mt = sMT[sl]
        ws_ = sO5 if sl == 3 else sWS
        e(f'''s_lshr_b32 {sT0}, {mt}, 3
        s_lshl_b32 {sT0}, {sT0}, 2
        s_add_u32 {sT0}, {sT0}, {sWV}
        s_lshl_b32 {sT0}, {sT0}, 11
        s_bfe_u32 {sT1}, {mt}, 0x20001
        s_lshl_b32 {sT1}, {sT1}, 17
        s_add_u32 {sT0}, {sT0}, {sT1}
        s_add_u32 {sT0}, {sT0}, {FL0 + 2*1024*128}
        v_add_u32 {vPA}, {sT0}, v11''')
        poll(None, None, 'o')
        if sl == 4: stamp(13)
        of = OF + 36*(sl & 1)
        e(f'''s_lshl_b32 {sT0}, {mt}, 15
        s_lshl_b32 {sT1}, {sWV}, 13
        s_add_u32 {sT0}, {sT0}, {sT1}
        s_add_u32 {sT0}, {sT0}, {OM0}
        s_add_u32 {sT1}, {sT0}, 4096
        s_lshr_b32 {sT2}, {mt}, 1
        s_lshl_b32 {sT2}, {sT2}, 13
        s_lshl_b32 {sT3}, {sWV}, 11
        s_add_u32 {sT2}, {sT2}, {sT3}
        s_and_b32 {sT3}, {mt}, 1
        s_lshl_b32 {sT3}, {sT3}, 6
        s_add_u32 {sT2}, {sT2}, {sT3}
        s_add_u32 {sT2}, {sT2}, {OL0}''')
        for s in range(8):
            e(f'buffer_load_dwordx4 {a(of+4*s,4)}, {vL16}, {ws_}, {sT0 if s < 4 else sT1} offen offset:{(s & 3)*1024} sc1')
        for q in range(4):
            e(f'buffer_load_dword {a(of+32+q)}, v10, {ws_}, {sT2} offen offset:{q*128} sc1')
        for s in range(9):
            for n in range(4):
                d = v(PACC+16*sl+4*n, 4)
                e(f'v_mfma_f32_16x16x32_bf16 {d}, {a(WOF+(s*4+n)*4,4)}, {a(of+4*s,4)}, {"0" if s == 0 else d}')
    stamp(14)
    e(f'''v_and_b32 {t0}, 15, {vLANE}
    v_lshrrev_b32 {t1}, 4, {vLANE}
    v_xor_b32 {t2}, {t0}, {t1}
    v_lshlrev_b32 {t2}, 4, {t2}
    v_lshl_add_u32 {t2}, {t0}, 8, {t2}
    v_add_u32 v2, {sWM}, {t2}
    v_xor_b32 v3, 64, v2
    v_xor_b32 v4, 128, v2
    v_xor_b32 v5, 192, v2
    s_lshl_b32 {sT0}, {sWV}, 2
    v_add_u32 {t1}, {sT0}, {t1}
    v_xor_b32 {t2}, {t0}, {t1}
    v_lshlrev_b32 {t2}, 4, {t2}
    v_lshl_add_u32 v6, {t1}, 8, {t2}
    v_add_u32 v7, {2*WOW}, v6
    v_mul_u32_u24 {t1}, 1152, {t1}
    v_lshl_add_u32 v8, {t0}, 3, {t1}''')
    for sl in range(5):
        for n in range(4):
            e(f'ds_write_b128 v{2+n}, {v(PACC+16*sl+4*n,4)} offset:{sl*4096}')
    P.append(WAITLG()); e('s_barrier')
    for sl in range(5):
        for src in range(4):
            e(f'ds_read_b128 {v(PACC+16*sl+4*src,4)}, v{6 + (src >> 1)} offset:{(src & 1)*WOW + sl*4096}')
    for sl in range(5):
        b = PACC + 16*sl
        for r in range(4):
            e(f'v_add_f32 {v(b+r)}, {v(b+r)}, {v(b+4+r)}')
            e(f'v_add_f32 {v(b+8+r)}, {v(b+8+r)}, {v(b+12+r)}')
        for r in range(4): e(f'v_add_f32 {v(b+r)}, {v(b+r)}, {v(b+8+r)}')
        e(f'v_cvt_pk_bf16_f32 {v(b)}, {v(b)}, {v(b+1)}')
        e(f'v_cvt_pk_bf16_f32 {v(b+1)}, {v(b+2)}, {v(b+3)}')
        e(f's_mul_i32 {sT0}, {sMT[sl]}, {16*1152}\ns_lshl_b32 {sT1}, {sCL}, 7\ns_add_u32 {sT0}, {sT0}, {sT1}')
        e(f'buffer_store_dwordx2 {v(b,2)}, v8, {sOUT5 if sl == 3 else sOUT}, {sT0} offen')
    e('L_fin:')
    if cfg.pad_us:
        P.append(DRAIN())
        e(f's_add_u32 s100, s100, {cfg.pad_us*100}')
        e('L_pad:')
        e('s_memrealtime s[74:75]\ns_waitcnt lgkmcnt(0)\ns_sub_u32 s74, s74, s100\ns_cmp_lt_i32 s74, 0\ns_cbranch_scc1 L_pad')
    if cfg.stamps:
        P.append(DRAIN())
        stamp(15)
        e(f's_memrealtime s[74:75]')
        e(f'v_writelane_b32 v255, s74, 17')
        e(f's_getreg_b32 s74, hwreg(HW_REG_XCC_ID)')
        e(f'v_writelane_b32 v255, s74, 18')
        e(f's_lshl_b32 {sT0}, {sPW}, 8\ns_add_u32 {sT0}, {sT0}, {ST0}')
        e(f'v_lshlrev_b32 {t0}, 2, {vLANE}')
        e(f'buffer_store_dword v255, {t0}, {sWS}, {sT0} offen')
    e('L_end:')
    e('s_endpgm')

HEADER = open('cdna_kernels/' + NAME + '.s.ref').read().split('; Override')[0] if True else ''

def build():
    prologue(); phase1(); attention(); phase3()
    out = finalize(P)
    body = text_of(out)
    src = HEADER + f'''; @launch grid=(256,1,1) block=(256,1,1) lds={LDS_BYTES}
.amdgcn_target "amdgcn-amd-amdhsa--gfx950"
.text
.globl {NAME}_kernel
.p2align 8
.type {NAME}_kernel,@function
{NAME}_kernel:
{body}
L_code_end:
.set CODE_PF_MAX, L_code_end - {NAME}_kernel - 1024 - 128
.section .rodata,"a"
.p2align 6
.amdhsa_kernel {NAME}_kernel
  .amdhsa_next_free_vgpr 512
  .amdhsa_next_free_sgpr 102
  .amdhsa_accum_offset 256
  .amdhsa_group_segment_fixed_size 0
  .amdhsa_kernarg_size 80
  .amdhsa_user_sgpr_count 2
  .amdhsa_user_sgpr_kernarg_segment_ptr 1
  .amdhsa_system_sgpr_workgroup_id_x 1
  .amdhsa_float_denorm_mode_32 3
.end_amdhsa_kernel
'''
    return src

if __name__ == '__main__':
    outp = sys.argv[1]
    for kv in sys.argv[2:]:
        k, val = kv.split('=')
        setattr(cfg, k, type(getattr(cfg, k))(int(val)))
    open(outp, 'w').write(build())
```

```python
import re

REG_RE = re.compile(r'^(-?)(?:abs\()?\|?([vas])(?:(\d+)|\[(\d+):(\d+)\])\|?\)?$')
TRANS = ('v_exp_', 'v_log_', 'v_rcp_', 'v_rsq_', 'v_sqrt_', 'v_sin_', 'v_cos_')

def regs_of(opnd):
    o = opnd.strip()
    if o in ('vcc', 'exec', 'm0', 'scc'):
        return [o]
    if o in ('vcc_lo', 'vcc_hi'):
        return ['vcc']
    if o in ('exec_lo', 'exec_hi'):
        return ['exec']
    m = REG_RE.match(o)
    if not m:
        return []
    k = m.group(2)
    if m.group(3) is not None:
        return [k + m.group(3)]
    return [k + str(i) for i in range(int(m.group(4)), int(m.group(5)) + 1)]

def split_ops(rest):
    ops, depth, cur = [], 0, ''
    for ch in rest:
        if ch in '[(':
            depth += 1
        if ch in '])':
            depth -= 1
        if ch == ',' and depth == 0:
            ops.append(cur.strip()); cur = ''
        else:
            cur += ch
    if cur.strip():
        ops.append(cur.strip())
    return ops

class Ins:
    __slots__ = ('text', 'op', 'reads', 'writes', 'kind', 'passes', 'srcc', 'ab', 'tok', 'arg', 'wide', 'data')
    def __init__(self, text):
        self.text = text
        self.tok = None; self.arg = None; self.passes = 0; self.srcc = []; self.ab = []; self.wide = False; self.data = []
        t = text.split(';')[0].strip()
        if t.endswith(':'):
            self.op = 'label'; self.kind = 'label'; self.reads = []; self.writes = []; return
        parts = t.split(None, 1)
        op = self.op = parts[0]
        ops = split_ops(parts[1]) if len(parts) > 1 else []
        mods = ''
        if ops:
            l = ops[-1].split(None, 1)
            if len(l) > 1 and not ops[-1].startswith('hwreg'):
                ops[-1] = l[0]; mods = l[1]
        R = [regs_of(o) for o in ops]
        flat = lambda L: [r for x in L for r in x]
        reads, writes = [], []
        if op.startswith('buffer_') or op.startswith('global_'):
            if ' lds' in (' ' + mods):
                self.kind = 'dma'; reads = flat(R) + ['m0']
            elif '_store' in op or ('_atomic' in op and 'sc0' not in mods):
                self.kind = 'vst'; reads = flat(R)
                self.data = R[0] if op.startswith('buffer_') else R[1]
                self.wide = 'x3' in op or 'x4' in op
            elif '_atomic' in op:
                self.kind = 'vld'; reads = flat(R); writes = R[0]
            else:
                self.kind = 'vld'; writes = R[0]; reads = flat(R[1:])
            reads.append('exec')
        elif op.startswith('ds_'):
            if op.startswith('ds_write'):
                self.kind = 'dsw'; reads = flat(R)
            else:
                self.kind = 'dsr'; writes = R[0]; reads = flat(R[1:])
            reads.append('exec')
        elif op.startswith('v_mfma'):
            self.kind = 'mfma'; writes = R[0]; reads = flat(R[1:])
            self.ab = R[1] + R[2]; self.srcc = R[3]
            self.passes = 8 if '32x32' in op else 4
        elif op.startswith('v_'):
            self.kind = 'trans' if op.startswith(TRANS) else 'valu'
            if op.startswith('v_permlane') and 'swap' in op:
                writes = R[0] + R[1]; reads = R[0] + R[1]
            elif op.startswith('v_cmpx'):
                writes = R[0] + ['exec']; reads = flat(R[1:])
            elif op.startswith(('v_add_co', 'v_sub_co', 'v_addc_co', 'v_subb_co')):
                writes = R[0] + R[1]; reads = flat(R[2:])
            elif op.startswith(('v_fmac', 'v_pk_fmac', 'v_writelane')):
                writes = R[0]; reads = flat(R)
            elif op == 'v_nop':
                pass
            else:
                writes = R[0]; reads = flat(R[1:])
            reads.append('exec')
        elif op.startswith('s_'):
            self.kind = 'salu'
            if op.startswith(('s_load', 's_buffer_load', 's_memtime', 's_memrealtime')):
                self.kind = 'smem'; writes = R[0]; reads = flat(R[1:])
            elif op.startswith('s_cmp') or op.startswith('s_bitcmp'):
                writes = ['scc']; reads = flat(R)
            elif op.startswith('s_cbranch') or op == 's_branch':
                self.kind = 'branch'
                if 'scc' in op: reads = ['scc']
                if 'vcc' in op: reads = ['vcc']
                if 'exec' in op: reads = ['exec']
            elif op in ('s_waitcnt', 's_barrier', 's_nop', 's_sleep', 's_setprio', 's_endpgm'):
                self.kind = op[2:]
                if op == 's_nop': self.arg = int(ops[0], 0)
            elif op.startswith('s_setpc'):
                self.kind = 'branch'; reads = flat(R)
            elif op.startswith('s_swappc'):
                self.kind = 'branch'; writes = R[0]; reads = flat(R[1:])
            else:
                writes = R[0] + ['scc']; reads = flat(R[1:])
                if op.startswith(('s_mov', 's_mul', 's_getreg', 's_getpc', 's_cselect', 's_movk', 's_cmov')):
                    writes = R[0]
                if op.startswith(('s_cselect', 's_addc', 's_subb', 's_cmov')):
                    reads.append('scc')
                if op.startswith(('s_addk', 's_mulk', 's_cmov')):
                    reads += R[0]
                if 'saveexec' in op:
                    writes = writes + ['exec']; reads.append('exec')
        elif op.startswith('.'):
            self.kind = 'dir'
        else:
            raise ValueError('unknown instruction: ' + text)
        self.reads = reads; self.writes = writes

class Pseudo:
    def __init__(self, kind, arg=None):
        self.kind = kind; self.arg = arg; self.reads = []; self.writes = []; self.text = '; ' + kind; self.tok = None; self.op = kind

def I(text, tok=None):
    i = Ins(text); i.tok = tok; return i
def WAITVM(*toks): return Pseudo('waitvm', set(toks))
def WAITLG(*toks): return Pseudo('waitlg', set(toks))
def DRAIN(): return Pseudo('drain')

VALUISH = ('valu', 'trans')
def is_v(r): return r[0] in 'va' and r[1:].isdigit()
def is_s(r): return (r[0] == 's' and r[1:].isdigit()) or r == 'vcc'

def need_states(prev, cur):
    n = 0
    pk, ck = prev.kind, cur.kind
    pw = set(prev.writes)
    if pk in VALUISH:
        vw = {r for r in pw if is_v(r)}
        sw = {r for r in pw if is_s(r)}
        if ck == 'mfma' and vw & set(cur.reads): n = max(n, 2)
        if ck in VALUISH:
            if cur.op.startswith('v_permlane') and vw & set(cur.reads): n = max(n, 2)
            if cur.op.startswith(('v_readlane', 'v_readfirstlane')) and vw & set(cur.reads): n = max(n, 1)
            if 'dpp' in cur.text or 'row_' in cur.text or 'quad_perm' in cur.text:
                if vw & set(cur.reads): n = max(n, 2)
            if pk == 'trans' and ck == 'valu' and vw & set(cur.reads): n = max(n, 1)
            if sw & set(cur.reads): n = max(n, 4 if cur.op.startswith(('v_readlane', 'v_writelane')) else 2)
            if ('op_sel' in prev.text or 'sdwa' in prev.text) and not prev.op.startswith('v_pk_') and vw & set(cur.reads + cur.writes): n = max(n, 1)
        if ck in ('vld', 'vst', 'dma') and sw & set(cur.reads): n = max(n, 5)
        if ck in ('salu', 'smem', 'branch') and sw & set(cur.reads): n = max(n, 1)
        if 'exec' in pw and ck == 'mfma': n = max(n, 4)
        if 'exec' in pw and ck in VALUISH: n = max(n, 4)
    if pk == 'mfma':
        big = {4: 8, 8: 12}[prev.passes]
        if ck in VALUISH + ('vld', 'vst', 'dma', 'dsr', 'dsw'):
            if pw & (set(cur.reads) | set(cur.writes)): n = max(n, big)
        if ck == 'mfma':
            if pw & set(cur.ab): n = max(n, big)
            if pw & set(cur.srcc):
                if not (list(prev.writes) == list(cur.srcc) and prev.passes == cur.passes):
                    n = max(n, prev.passes + 2)
            elif pw & set(cur.writes):
                n = max(n, prev.passes + 2)
        if ck in VALUISH + ('vld', 'dsr') and set(prev.srcc) & set(cur.writes):
            n = max(n, prev.passes - 1)
    if pk == 'salu' and 'm0' in pw and ck == 'dma': n = max(n, 1)
    if pk == 'vst' and prev.wide and set(prev.data) & set(cur.writes):
        n = max(n, 2)
    return n

def insert_waits(prog):
    out = []
    vmq = []
    lgq = []
    def wait(vm=None, lg=None):
        parts = []
        w = [None, None]
        if vm is not None:
            vm = min(vm, 62); parts.append(f'vmcnt({vm})'); w[0] = vm
            del vmq[:max(0, len(vmq) - vm)]
        if lg is not None:
            if any(e[2] for e in lgq): lg = 0
            lg = min(lg, 14); parts.append(f'lgkmcnt({lg})'); w[1] = lg
            del lgq[:max(0, len(lgq) - lg)]
        if parts:
            if out and out[-1].kind == 'waitcnt' and isinstance(out[-1].arg, list):
                p = out.pop().arg
                w = [x if y is None else (y if x is None else min(x, y)) for x, y in zip(w, p)]
            out.append(mkwait(w))
    for ins in prog:
        if isinstance(ins, Pseudo):
            if ins.kind == 'waitvm':
                pos = [i for i, e in enumerate(vmq) if e[1] in ins.arg]
                if pos: wait(vm=len(vmq) - 1 - max(pos))
            elif ins.kind == 'waitlg':
                if ins.arg:
                    pos = [i for i, e in enumerate(lgq) if e[1] in ins.arg]
                    if pos: wait(lg=len(lgq) - 1 - max(pos))
                elif lgq: wait(lg=0)
            elif ins.kind == 'drain':
                wait(vm=0, lg=0)
            continue
        touched = set(ins.reads) | set(ins.writes)
        vm = lg = None
        pos = [i for i, e in enumerate(vmq) if e[0] & touched]
        if pos: vm = len(vmq) - 1 - max(pos)
        pos = [i for i, e in enumerate(lgq) if e[0] & touched]
        if pos: lg = len(lgq) - 1 - max(pos)
        wait(vm, lg)
        if ins.kind == 'waitcnt':
            m = re.search(r'vmcnt\((\d+)\)', ins.text)
            if m: del vmq[:max(0, len(vmq) - int(m.group(1)))]
            m = re.search(r'lgkmcnt\((\d+)\)', ins.text)
            if m and (int(m.group(1)) == 0 or not any(e[2] for e in lgq)): del lgq[:max(0, len(lgq) - int(m.group(1)))]
        out.append(ins)
        if ins.kind in ('vld', 'vst', 'dma'):
            vmq.append((set(ins.writes), ins.tok))
        if ins.kind in ('dsr', 'dsw'):
            lgq.append((set(ins.writes), ins.tok, False))
        if ins.kind == 'smem':
            lgq.append((set(ins.writes), ins.tok, True))
    return out

def mkwait(w):
    parts = []
    if w[0] is not None: parts.append(f'vmcnt({w[0]})')
    if w[1] is not None: parts.append(f'lgkmcnt({w[1]})')
    i = Ins('s_waitcnt ' + ' '.join(parts)); i.arg = list(w); return i

def hoist_waits(L, maxback=3):
    L = list(L)
    p = 0
    while p < len(L):
        x = L[p]
        if x.kind == 'waitcnt' and isinstance(x.arg, list) and x.arg[0] is None and p + 1 < len(L) and L[p+1].kind == 'mfma':
            q = p - 1; ds = 0; ok = False
            while q >= 0 and p - q <= maxback + 1:
                k = L[q].kind
                if k == 'mfma': ok = True; break
                if k in ('dsr', 'dsw'): ds += 1
                elif k in ('dma', 'vld', 'vst', 'valu', 'trans'): pass
                else: break
                q -= 1
            if ok and q < p - 1 and x.arg[1] - ds >= 0:
                del L[p]
                L.insert(q + 1, mkwait([None, x.arg[1] - ds]))
        p += 1
    return L

def insert_nops(L):
    out = []
    for ins in L:
        need = 0; dist = 0
        for p in reversed(out):
            if p.kind in ('dir', 'label'): continue
            need = max(need, need_states(p, ins) - dist)
            dist += (p.arg + 1) if p.kind == 'nop' else 1
            if dist >= 20: break
        while need > 0:
            k = min(need, 16)
            out.append(Ins(f's_nop {k-1}')); need -= k
        out.append(ins)
    return out

def finalize(prog):
    return insert_nops(hoist_waits(insert_waits(prog)))

PROMO = ('v_exp_f32', 'v_mul_f32', 'v_add_f32', 'v_mov_b32', 'v_max_f32', 'v_rcp_f32', 'v_sub_f32', 'v_add_u32', 'v_and_b32',
         'v_xor_b32', 'v_lshlrev_b32', 'v_lshrrev_b32', 'v_cmp_ne_u64', 'v_cmp_neq_f32', 'v_accvgpr_mov_b32x')
def align8(L, sizes):
    real = [i for i in L if i.kind not in ('label', 'dir')]
    assert len(real) == len(sizes), (len(real), len(sizes))
    off = 0; run = []
    miss = 0
    for ins, sz in zip(real, sizes):
        if sz == 4:
            run.append(ins); off += 4
        else:
            if off % 8:
                c = [r for r in run if r.op in PROMO]
                if c:
                    r = c[0]
                    r.text = r.text.replace(r.op, r.op + '_e64', 1); r.op += '_e64'; off += 4
                else: miss += 1
            run = []; off += sz
    return miss

def text_of(out):
    return '\n'.join((i.text if i.kind == 'label' else '  ' + i.text) for i in out)
```

```python
import sys, math, struct, subprocess, re
from asmgen import *

NAME = "gated_mix__sliding_block__sliding_block__prompt"
class Cfg:
    stamps = 0
    mapping = 1
    force_fb = 0
    pad_us = 0
    NB = 7
    kflag_job = 19
    kpoll_job = 22
    kchk_job = 25
    vflag_it = 1
    vpoll_it = 5
    vchk_it = 8
    align = 1
    early_vq = 1
cfg = Cfg()

NX, NR = 3, 7
XR = 0
WR = NX * 16384
TB = WR + (NR + 2) * 9216
TL = TB + 16384
DUMP = TB + 20480
GW = TB + 24576
ZB = GW + 2048
assert ZB + 512 <= 163840
LDS_BYTES = 163840
WOW = 36864
FL0 = 4096
KV0 = 1 << 20
KVW = 11264
OM0 = 13 << 20
OL0 = 17 << 20
ST0 = 18 << 20
SV0 = 19 << 20
WS_BYTES = 36 << 20
TAGC_LO, TAGC_HI = 0x7F4A7C15, 0x9E3779B9
SPIN_MAX = 1 << 17

sX, sW, sWS, sWO, sOUT, sG, sH1, sH2 = 's[4:7]', 's[8:11]', 's[12:15]', 's[16:19]', 's[20:23]', 's[24:27]', 's[40:43]', 's[44:47]'
sWV, sRB, sBR, sHG = 's28', 's29', 's30', 's31'
sXO, sWOF = 's32', 's33'
sGO = 's34'
sT0, sT1, sT2, sT3 = 's35', 's38', 's39', 's48'
sXE, sWE = 's36', 's37'
sXB, sWB = 's49', 's50'
sXM, sWM = 's51', 's52'
sPW = 's53'
sKV = ['s54', 's55', 's56']
sHB = [['s57', 's58', 's59'], ['s60', 's61', 's62']]
sFL = 's63'
sLOW = 's[64:65]'
sODD = 's[66:67]'
sOM, sOL = 's68', 's69'
sP, sGAM, sCL = 's70', 's71', 's72'
sSPIN = 's73'
sST = 's[76:77]'
sST0 = 's78'
sD0 = 's79'
sA, sB_, sC, sD = 's80', 's81', 's82', 's83'
sMT = ['s84', 's85', 's86', 's87', 's88']
sSCALE = 's[90:91]'
sO5 = 's[92:95]'
sOUT5 = 's[96:99]'
sLO, sHI = 's24', 's25'
sWOO = 's26'
sFI = 's27'
sF0, sF1, sF2 = 's89', 's3', 's74'

vLANE = 'v1'
vXd = ['v2', 'v3', 'v4', 'v5']
vWd = ['v6', 'v7', 'v8']
vXr = ['v9', 'v10']
vWr = ['v11', 'v12']
vG = 'v13'
vTw = ['v14', 'v15', 'v16', 'v17', 'v18']
vF1, vFL, vFV = 'v19', 'v20', 'v21'
vL16, vPV = 'v22', 'v23'
vOM, vOL = 'v24', 'v25'
vT = ['v26', 'v27', 'v28', 'v29', 'v30', 'v31']
ACCS = [32, 72, 32]
GACC = 112
WF = 120
GF = 160
QL = 168
BIASF = 184
BIASD = 200
PSL = [128, 136, 144, 152, 160, 216, 224, 200, 208]
SB = 32
OA = 64
TAGV, POLL, POLL2 = 232, 234, 236
vPA, vPB, vZERO, vGb = 'v238', 'v239', 'v240', 'v241'
GFAC = 242
vU = 'v246'
vZA = 'v247'
OST = 248
vWO = 'v253'
vO16 = 'v254'
XF = 0
LK1, LKL, LV = 144, 160, 164
HK1 = [196, 216]; HKL = [212, 232]
Q1 = 236
HV = [0, 32]

def v(b, n=1): return f'v{b}' if n == 1 else f'v[{b}:{b+n-1}]'
def a(b, n=1): return f'a{b}' if n == 1 else f'a[{b}:{b+n-1}]'

P = []
OOL = []
def L(text, tok=None):
    return [I(x.strip(), tok) for x in text.strip().split('\n') if x.strip()]
def e(x, tok=None):
    if isinstance(x, str): P.extend(L(x, tok))
    elif isinstance(x, list): P.extend(x)
    else: P.append(x)
def stampL(i):
    if not cfg.stamps: return []
    return L(f's_memtime {sST}\ns_sub_u32 s75, s76, {sST0}\nv_writelane_b32 v255, s75, {i}')
def stamp(i): e(stampL(i))
_lbl = [0]
def newlabel(p):
    _lbl[0] += 1
    return f'L_{p}_{_lbl[0]}'
def srd(dst, lo, hi, size):
    b = int(dst[2:dst.index(':')])
    return L(f's_mov_b32 s{b}, {lo}\ns_mov_b32 s{b+1}, {hi}\ns_mov_b32 s{b+2}, {size}\ns_mov_b32 s{b+3}, 0x20000')
def f32(x): return struct.unpack('<I', struct.pack('<f', x))[0]

def is_free(x): return isinstance(x, Pseudo) or x.kind in ('salu', 'waitcnt', 'branch', 'label', 'barrier')
def weave(M, D, F):
    out = []; n = len(M); d = f = 0
    for i, m in enumerate(M):
        out.append(m)
        fw = -(-(i + 1) * len(F) // n); dw = -(-(i + 1) * len(D) // n)
        if f < fw and is_free(F[f]):
            out.append(F[f]); f += 1
            while f < len(F) and (isinstance(F[f], Pseudo) or F[f].kind == 'label'):
                out.append(F[f]); f += 1
        while d < dw: out.append(D[d]); d += 1
        while f < fw: out.append(F[f]); f += 1
    return out + D[d:] + F[f:]

def prologue():
    e('s_cmp_ge_u32 s2, 256\ns_cbranch_scc1 L_end')
    if cfg.stamps: e(f's_memtime {sST}\ns_memrealtime s[74:75]')
    if cfg.pad_us: e('s_memrealtime s[100:101]')
    e('''s_load_dwordx4 s[80:83], s[0:1], 0
    s_load_dwordx4 s[88:91], s[0:1], 32
    s_load_dwordx4 s[92:95], s[0:1], 48
    s_load_dwordx2 s[96:97], s[0:1], 72
    s_load_dwordx2 s[84:85], s[0:1], 16
    s_getpc_b64 s[98:99]''')
    e(f'''v_and_b32 {vLANE}, 63, v0
    v_lshlrev_b32 {vL16}, 4, {vLANE}
    v_lshrrev_b32 {vT[0]}, 6, v0
    s_lshr_b32 {sT0}, s2, 3
    v_readfirstlane_b32 {sWV}, {vT[0]}''')
    if cfg.mapping == 1:
        e(f'''s_and_b32 {sBR}, s2, 1
        s_bfe_u32 {sT1}, s2, 0x20001
        s_lshl_b32 {sT1}, {sT1}, 2
        s_and_b32 {sT2}, {sT0}, 3
        s_add_u32 {sRB}, {sT1}, {sT2}
        s_lshr_b32 {sHG}, {sT0}, 2
        s_lshl_b32 {sT2}, {sT2}, 1
        s_add_u32 {sGO}, {sHG}, {sT2}''')
    else:
        e(f'''s_and_b32 {sBR}, s2, 1
        s_bfe_u32 {sT1}, s2, 0x10002
        s_lshl_b32 {sT1}, {sT1}, 3
        s_and_b32 {sT2}, {sT0}, 7
        s_add_u32 {sRB}, {sT1}, {sT2}
        s_bfe_u32 {sT1}, s2, 0x10001
        s_lshl_b32 {sT1}, {sT1}, 2
        s_lshr_b32 {sT3}, {sT0}, 3
        s_add_u32 {sHG}, {sT1}, {sT3}
        s_lshl_b32 {sT3}, {sT3}, 1
        s_add_u32 {sGO}, {sT2}, {sT3}''')
    e(f'''s_cmp_ge_u32 {sGO}, 9
    s_cselect_b32 {sT1}, 9, 0
    s_sub_u32 {sGO}, {sGO}, {sT1}''')
    e(f'''s_and_b32 {sT1}, {sWV}, 1
    s_lshl_b32 {sT1}, {sT1}, 5
    s_add_u32 {sT1}, {sT1}, {sT0}
    s_lshl_b32 {sT1}, {sT1}, 10
    s_min_u32 {sT1}, {sT1}, CODE_PF_MAX
    v_add_u32 {vT[1]}, {sT1}, {vL16}
    global_load_dwordx4 v[216:219], {vT[1]}, s[98:99]''')
    t0, t1, t2, t3, t4, t5 = vT
    e(f'''v_lshrrev_b32 {t0}, 3, {vLANE}
    v_and_b32 {t1}, 7, {vLANE}
    v_lshrrev_b32 {t2}, 1, {t0}
    v_xor_b32 {t1}, {t1}, {t2}
    v_mul_u32_u24 {t0}, 1152, {t0}
    v_lshl_add_u32 {vXd[0]}, {t1}, 4, {t0}
    v_xor_b32 {t1}, 4, {t1}
    v_lshl_add_u32 {vXd[1]}, {t1}, 4, {t0}
    v_add_u32 {vXd[1]}, {8*1152-1024}, {vXd[1]}
    v_add_u32 {vXd[2]}, {16*1152-2048}, {vXd[0]}
    v_add_u32 {vXd[3]}, {16*1152-2048}, {vXd[1]}''')
    for i, F in enumerate((0, 64, 80)):
        e(f'''v_add_u32 {t0}, {F}, {vLANE}
        v_mul_u32_u24 {t1}, 7282, {t0}
        v_lshrrev_b32 {t1}, 16, {t1}
        v_mul_u32_u24 {t2}, 9, {t1}
        v_sub_u32 {t0}, {t0}, {t2}
        v_and_b32 {t2}, 1, {t1}
        v_lshlrev_b32 {t2}, 4, {t2}
        v_and_b32 {t3}, 8, {t1}
        v_bfe_u32 {t4}, {t1}, 1, 2
        v_add3_u32 {t2}, {t2}, {t3}, {t4}
        v_mul_u32_u24 {t2}, 3456, {t2}
        v_lshl_add_u32 {vWd[i]}, {t0}, 4, {t2}''')
        if F: e(f'v_subrev_u32 {vWd[i]}, {16*F}, {vWd[i]}')
    e(f'''s_lshl_b32 {sT1}, {sRB}, 2
    s_add_u32 {sT1}, {sT1}, {sWV}
    s_mul_i32 {sXB}, {sT1}, {32*1152}
    s_lshr_b32 {sT1}, {sWV}, 1
    s_lshl_b32 {sT1}, {sT1}, 3
    s_and_b32 {sT2}, {sWV}, 1
    s_add_u32 {sT1}, {sT1}, {sT2}
    s_mul_i32 {sWB}, {sT1}, {4*3456}
    s_mul_i32 {sT1}, {sHG}, 144
    s_add_u32 {sWB}, {sWB}, {sT1}
    s_mul_i32 {sXM}, {sWV}, {NX*4096}
    s_mul_i32 {sWM}, {sWV}, 2304
    s_add_u32 {sWM}, {sWM}, {WR}
    s_mul_i32 {sWOF}, {sGO}, {64*3456}
    s_add_u32 {sWOF}, {sWOF}, {sWB}
    s_add_u32 {sWE}, {sWB}, {576*3456}
    s_lshl_b32 {sGO}, {sGO}, 7
    s_add_u32 {sXO}, {sGO}, {sXB}
    s_add_u32 {sXE}, {sXB}, 1152
    v_mov_b32 {vZERO}, 0''')
    e(srd(sX, 's80', 's81', 2048*1152))
    e(f's_cmp_eq_u32 {sBR}, 0\ns_cselect_b32 s8, s82, s88\ns_cselect_b32 s9, s83, s89\ns_mov_b32 s10, {576*3456}\ns_mov_b32 s11, 0x20000')
    if cfg.stamps: e(f's_mov_b32 {sST0}, s76\nv_mov_b32 v255, 0\nv_writelane_b32 v255, s74, 32')

SEG = [1]*9 + [2]*9 + [0]*9
def x_unit(c):
    o = L(f's_add_u32 m0, {sXM}, {(c % NX)*4096}')
    for i in range(4):
        o += L(f'buffer_load_dwordx4 {vXd[i]}, {sX}, {sXO} offen offset:{1024*i} lds', tok=('X', c))
    o += L(f's_add_u32 {sXO}, {sXO}, 128\ns_cmp_eq_u32 {sXO}, {sXE}\ns_cselect_b32 {sXO}, {sXB}, {sXO}')
    return o
WSLOT = {}
def w_unit(j, advance=1):
    o = []
    so = sWOF
    if SEG[j]:
        o += L(f's_add_u32 {sD0}, {sWOF}, {SEG[j]*1152}'); so = sD0
    o += L(f's_add_u32 m0, {sWM}, {WSLOT[j]*9216}')
    for i, F in enumerate((0, 64, 80)):
        o += L(f'buffer_load_dwordx4 {vWd[i]}, {sW}, {so} offen offset:{16*F} lds', tok=('W', j))
    for _ in range(advance):
        o += L(f's_add_u32 {sWOF}, {sWOF}, {64*3456}\ns_cmp_eq_u32 {sWOF}, {sWE}\ns_cselect_b32 {sWOF}, {sWB}, {sWOF}')
    return o

def setup_rest():
    t0, t1, t2, t3, t4, t5 = vT
    e(srd(sOUT, 's94', 's95', 2048*1152))
    e(f's_cmp_lt_u32 {sWV}, 2\ns_cselect_b32 s16, s84, s90\ns_cselect_b32 s17, s85, s91\ns_mov_b32 s18, {576*1152}\ns_mov_b32 s19, 0x20000')
    for d, s_ in ((1, 40), (2, 44)):
        e(f's_mov_b32 s{s_}, s96\ns_mov_b32 s{s_+1}, s97\ns_cmp_ge_u32 {sRB}, {d}\ns_cselect_b32 s{s_+2}, {WS_BYTES}, 0\ns_mov_b32 s{s_+3}, 0x20000')
    e(f'''v_and_b32 {t0}, 15, {vLANE}
    v_lshrrev_b32 {t1}, 4, {vLANE}
    v_lshrrev_b32 {t2}, 1, {t0}
    v_xor_b32 {t2}, {t1}, {t2}
    v_lshlrev_b32 {t3}, 7, {t0}
    v_add_u32 {t3}, {sXM}, {t3}
    v_lshl_add_u32 {vXr[0]}, {t2}, 4, {t3}
    v_xor_b32 {vXr[1]}, 64, {vXr[0]}
    v_lshlrev_b32 {vGb}, 4, {t1}
    v_add_u32 {vGb}, {GW}, {vGb}''')
    e(f'''v_and_b32 {t2}, 1, {t1}
    v_lshlrev_b32 {t2}, 3, {t2}
    v_bfe_u32 {t3}, {vLANE}, 2, 2
    v_lshl_add_u32 {t2}, {t3}, 1, {t2}
    v_lshrrev_b32 {t4}, 1, {t1}
    v_add_u32 {t2}, {t2}, {t4}
    v_mul_u32_u24 {t2}, 144, {t2}
    v_and_b32 {t4}, 3, {vLANE}
    v_lshl_add_u32 {vWr[0]}, {t4}, 3, {t2}
    v_add_u32 {vWr[0]}, {WR}, {vWr[0]}
    v_add_u32 {vWr[1]}, {7*9216}, {vWr[0]}''')

def setup_late():
    t0, t1, t2, t3, t4, t5 = vT
    o = []
    o += L(f'''v_and_b32 {t0}, 15, {vLANE}
    v_lshrrev_b32 {t1}, 4, {vLANE}
    s_lshl_b32 {sT0}, {sWV}, 10
    s_add_u32 {sT0}, {sT0}, {TB}
    v_lshlrev_b32 {t2}, 4, {t0}
    v_add_u32 {t2}, {sT0}, {t2}
    v_lshlrev_b32 {t1}, 4, {t1}''')
    for n in range(5):
        offs = []
        for gq in range(4):
            G = 4*n + gq
            if G >= 18: of = 20480
            else:
                p, g9 = divmod(G, 9)
                if g9 == 4: of = 16384 + p*512
                else:
                    head = 2*p + (g9 > 4); mi = g9 if g9 < 4 else g9-5
                    of = head*4096 + (mi >> 1)*512 + (mi & 1)*8
            offs.append(of)
        o += L(f'''s_mov_b32 {sA}, {offs[0] | offs[1] << 16}
        s_mov_b32 {sB_}, {offs[2] | offs[3] << 16}
        v_lshrrev_b64 v[30:31], {t1}, s[80:81]
        v_and_b32 v30, 0xffff, v30
        v_add_u32 {vTw[n]}, v30, {t2}''')
    o += L(f'''s_lshl_b32 {sT0}, {sWV}, 7
    s_add_u32 {sT0}, {sT0}, {ZB}
    v_lshlrev_b32 {vZA}, 2, {t0}
    v_add_u32 {vZA}, {sT0}, {vZA}''')
    o += L(f's_mov_b32 s64, -1\ns_mov_b32 s65, 0\ns_bitcmp1_b32 {sWV}, 0\ns_cselect_b32 s66, -1, 0\ns_mov_b32 s67, s66')
    o += L(f'''s_lshl_b32 {sT0}, {sWV}, 12
    s_add_u32 {sT0}, {sT0}, {TB}
    v_add_u32 {vF1}, {sT0}, {vL16}
    s_lshr_b32 {sT1}, {sWV}, 1
    s_lshl_b32 {sT1}, {sT1}, 9
    s_add_u32 {sT1}, {sT1}, {TL}
    s_and_b32 {sT2}, {sWV}, 1
    s_lshl_b32 {sT2}, {sT2}, 2
    v_and_b32 {t0}, 31, {vLANE}
    v_lshlrev_b32 {t0}, 4, {t0}
    v_add_u32 {t0}, {sT1}, {t0}
    v_mov_b32 {t1}, {sT2}
    v_cndmask_b32 {t1}, 8, {t1}, {sLOW}
    v_add_u32 {vFL}, {t0}, {t1}''')
    o += L(f'''v_lshrrev_b32 {t0}, 5, {vLANE}
    v_bfe_u32 {t1}, {vLANE}, 2, 2
    v_lshl_add_u32 {t0}, {t0}, 2, {t1}
    v_lshlrev_b32 {t0}, 4, {t0}
    v_bfe_u32 {t1}, {vLANE}, 1, 1
    v_lshlrev_b32 {t1}, 9, {t1}
    v_and_b32 {t2}, 1, {vLANE}
    v_lshl_add_u32 {t1}, {t2}, 3, {t1}
    v_add_u32 {t1}, {sT0}, {t1}
    v_and_b32 {t2}, 3, {vLANE}
    v_min_u32 {t2}, 1, {t2}
    v_lshlrev_b32 {t2}, 3, {t2}
    v_add_u32 {t2}, {sT1}, {t2}
    v_and_b32 {t3}, 16, {vLANE}
    v_cmp_eq_u32 vcc, 0, {t3}
    v_cndmask_b32 {t1}, {t2}, {t1}, vcc
    v_add_u32 {vFV}, {t0}, {t1}''')
    o += L(f'''v_lshlrev_b32 {t0}, 4, v0
    v_add_u32 {t0}, {TL+8}, {t0}
    v_mov_b32 v30, 0x3f803f80
    v_mov_b32 v31, 0x3f803f80''')
    o += L(f'ds_write_b64 {t0}, v[30:31]', tok='T')
    o += L(f'''v_and_b32 {t0}, 31, {vLANE}
    v_min_u32 {t0}, 23, {t0}
    v_lshrrev_b32 {t1}, 5, {vLANE}
    v_mul_u32_u24 {t2}, 24, {t1}
    v_add_lshl_u32 {vPV}, {t0}, {t2}, 4
    v_bfe_u32 {t0}, {vLANE}, 4, 1
    v_lshlrev_b32 {t0}, 15, {t0}
    v_lshl_add_u32 {t0}, {t1}, 8, {t0}
    v_and_b32 {t2}, 15, {vLANE}
    v_lshl_add_u32 {vOM}, {t2}, 4, {t0}
    v_lshlrev_b32 {vO16}, 7, {t2}
    v_lshlrev_b32 {t0}, 2, {vLANE}
    v_mov_b32 {t2}, 0x7f000000
    v_cndmask_b32 {vOL}, {t2}, {t0}, {sLOW}''')
    o += L(f'''s_lshl_b32 {sT0}, {sRB}, 1
    s_add_u32 {sT0}, {sT0}, {sBR}
    s_lshl_b32 {sT0}, {sT0}, 3
    s_add_u32 {sT0}, {sT0}, {sHG}
    s_lshl_b32 {sT0}, {sT0}, 2
    s_add_u32 {sPW}, {sT0}, {sWV}
    s_mul_i32 {sKV[0]}, {sPW}, {KVW}
    s_add_u32 {sKV[0]}, {sKV[0]}, {KV0}
    s_add_u32 {sKV[1]}, {sKV[0]}, 4096
    s_add_u32 {sKV[2]}, {sKV[0]}, 8192
    s_lshl_b32 {sFL}, {sPW}, 7
    s_add_u32 {sFL}, {sFL}, {FL0}''')
    for d in (1, 2):
        o += L(f's_cmp_ge_u32 {sRB}, {d}\ns_cselect_b32 {sT0}, {64*d*KVW}, 0')
        for k in range(3): o += L(f's_sub_u32 {sHB[d-1][k]}, {sKV[k]}, {sT0}')
    o += L(f'''s_lshl_b32 {sT0}, {sBR}, 3
    s_add_u32 {sT0}, {sT0}, {sHG}
    s_lshl_b32 {sT0}, {sT0}, 2
    s_add_u32 {sT0}, {sT0}, {sWV}
    s_lshl_b32 {sOM}, {sT0}, 9
    s_lshl_b32 {sT1}, {sRB}, 18
    s_add_u32 {sOM}, {sOM}, {sT1}
    s_add_u32 {sOM}, {sOM}, {OM0}
    s_lshl_b32 {sOL}, {sT0}, 7
    s_lshl_b32 {sT1}, {sRB}, 15
    s_add_u32 {sOL}, {sOL}, {sT1}
    s_add_u32 {sOL}, {sOL}, {OL0}''')
    o += L(f'''s_cmp_ge_u32 {sRB}, 1
    s_cselect_b32 {sA}, {64*128}, 0
    s_cmp_ge_u32 {sRB}, 2
    s_cselect_b32 {sB_}, {128*128}, 0
    s_sub_u32 {sA}, {sFL}, {sA}
    s_sub_u32 {sB_}, {sFL}, {sB_}
    v_mov_b32 {t0}, {sA}
    v_mov_b32 {t1}, {sB_}
    v_cndmask_b32 {vPA}, {t1}, {t0}, {sLOW}
    v_add_u32 {vPB}, {1024*128}, {vPA}''')
    o += L(f'''v_and_b32 {t0}, 31, {vLANE}
    v_lshrrev_b32 {t1}, 5, {vLANE}
    v_lshlrev_b32 {t1}, 2, {t1}
    v_sub_u32 {vU}, {t0}, {t1}
    s_mov_b32 {sA}, 0xff800000''')
    for r in range(16):
        c = 8*(r >> 2) + (r & 3)
        o += L(f'''v_subrev_u32 {t1}, {c}, {vU}
        v_ashrrev_i32 {t1}, 31, {t1}
        v_and_b32 {v(BIASD+r)}, {sA}, {t1}
        v_xor_b32 {v(BIASF+r)}, {sA}, {v(BIASD+r)}''')
    for i in range(4): o += L(f'v_mov_b32 {v(QL+4*i+1)}, 0\nv_mov_b32 {v(QL+4*i+2)}, 0')
    sc = f32(math.log2(math.e) / math.sqrt(18.0))
    o += L(f's_mov_b32 s90, {sc:#x}\ns_mov_b32 s91, {sc:#x}')
    o += L(f'v_add_u32 {v(TAGV)}, {TAGC_LO:#x}, {v(TAGV)}\nv_add_u32 {v(TAGV+1)}, {TAGC_HI:#x}, {v(TAGV+1)}')
    o += L(f'''s_and_b32 {sT0}, s2, 7
    s_lshl_b32 {sT0}, {sT0}, 5
    s_lshr_b32 {sT1}, s2, 3
    s_add_u32 {sP}, {sT0}, {sT1}
    s_mul_i32 {sGAM}, {sP}, 7282
    s_lshr_b32 {sGAM}, {sGAM}, 16
    s_mul_i32 {sT0}, {sGAM}, 9
    s_sub_u32 {sCL}, {sP}, {sT0}
    s_min_u32 {sGAM}, {sGAM}, 27
    s_lshr_b32 {sT0}, {sGAM}, 1
    s_add_u32 {sT0}, {sT0}, 2
    s_lshl_b32 {sT0}, {sT0}, 3
    s_and_b32 {sT1}, {sGAM}, 1
    s_add_u32 {sMT[4]}, {sT0}, {sT1}
    s_add_u32 {sMT[3]}, {sMT[4]}, 2
    s_add_u32 {sMT[1]}, {sMT[4]}, 4
    s_add_u32 {sMT[0]}, {sMT[4]}, 6
    s_and_b32 {sMT[2]}, {sGAM}, 15''')
    o += [I(f's_cmp_lt_u32 {sGAM}, 16'), I(f's_cselect_b32 s94, {WS_BYTES}, 0')]
    o += [I(f's_cmp_lt_u32 {sGAM}, 16'), I(f's_cselect_b32 s98, {2048*1152}, 0')]
    o += [I(f's_cmp_lt_u32 {sGAM}, 16'), I(f's_cselect_b32 {sMT[2]}, {sMT[2]}, {sMT[1]}')]
    o += L('s_mov_b32 s92, s12\ns_mov_b32 s93, s13\ns_mov_b32 s95, 0x20000\ns_mov_b32 s96, s20\ns_mov_b32 s97, s21\ns_mov_b32 s99, 0x20000')
    o += L(f'''v_lshrrev_b32 {t0}, 3, {vLANE}
    v_and_b32 {t1}, 7, {vLANE}
    v_and_b32 {t2}, 6, {t0}
    v_xor_b32 {t1}, {t1}, {t2}
    v_mul_u32_u24 {t0}, 1152, {t0}
    v_lshl_add_u32 {vWO}, {t1}, 4, {t0}''')
    return o

def acc(st, m, n): return ACCS[st] + (m*5 + n)*4
def xf(c, ks, m): return XF + ((c*2 + ks)*2 + m)*4
def w_reads(j, ks):
    buf = WF + ((2*j + ks) & 1)*20
    sl = WSLOT[j]; base = vWr[sl // 7]; so = (sl % 7)*9216
    return [I(f'ds_read_b64_tr_b16 {v(buf+4*n+2*rd, 2)}, {base} offset:{so + ks*4608 + rd*2304 + n*32}') for n in range(5) for rd in range(2)]
def mfmas(j, ks):
    o = []
    buf = WF + ((2*j + ks) & 1)*20
    first = (j % 9 == 0 and ks == 0); st = j // 9
    for n in range(5):
        for m in range(2):
            c = '0' if first else v(acc(st, m, n), 4)
            o.append(I(f'v_mfma_f32_16x16x32_bf16 {v(acc(st,m,n),4)}, {v(buf+4*n,4)}, {a(xf(j % 9, ks, m),4)}, {c}'))
    if j < 9:
        for m in range(2):
            c = '0' if first else v(GACC+4*m, 4)
            o.append(I(f'v_mfma_f32_16x16x32_bf16 {v(GACC+4*m,4)}, {v(GF+4*ks,4)}, {a(xf(j, ks, m),4)}, {c}'))
    return o

def flag_store(stage, tok):
    return [WAITVM(tok)] + L(f's_add_u32 {sT0}, {sFL}, {stage*1024*128}\nbuffer_store_dwordx2 {v(TAGV,2)}, {vZERO}, {sWS}, {sT0} offen sc1')

def tile_epi(st, m, n):
    b = acc(st, m, n); o = []
    if st == 0:
        o += L(f'v_pk_mul_f32 {v(b,2)}, {v(b,2)}, {sSCALE}\nv_pk_mul_f32 {v(b+2,2)}, {v(b+2,2)}, {sSCALE}')
    o += L(f'v_cvt_pk_bf16_f32 {v(b)}, {v(b)}, {v(b+1)}\nv_cvt_pk_bf16_f32 {v(b+1)}, {v(b+2)}, {v(b+3)}')
    o += L(f'ds_write_b64 {vTw[n]}, {v(b,2)} offset:{m*256}', tok='T')
    return o
def stage_epi(st): return [x for n in range(5) for m in range(2) for x in tile_epi(st, m, n)]
def gate_epi():
    o = L(f's_cmp_eq_u32 {sBR}, 0\ns_cselect_b64 s[82:83], -1, 0')
    for m in range(2):
        z = v(GACC+4*m); t = v(GACC+4*m+1)
        o += L(f'''v_cvt_pk_bf16_f32 {z}, 0, {z}
        v_mul_f32 {z}, 0xbfb8aa3b, {z}
        v_exp_f32 {z}, {z}
        v_add_f32 {z}, 1.0, {z}
        v_rcp_f32 {z}, {z}
        v_cvt_pk_bf16_f32 {z}, 0, {z}
        v_sub_f32 {t}, 1.0, {z}
        v_cvt_pk_bf16_f32 {t}, 0, {t}
        v_cndmask_b32 {z}, {t}, {z}, s[82:83]''')
        o += L(f'ds_write_b32 {vZA}, {z} offset:{m*64}', tok='T')
    return o
def gfac_reads():
    o = L(f'v_and_b32 {vT[0]}, 31, {vLANE}\nv_lshlrev_b32 {vT[0]}, 2, {vT[0]}\nv_add_u32 {vT[0]}, {ZB}, {vT[0]}')
    return o + [I(f'ds_read_b32 {v(GFAC+i)}, {vT[0]} offset:{i*128}') for i in range(4)]
def k_reads():
    o = [I(f'ds_read_b128 {a(LK1+4*t,4)}, {vF1} offset:{t*1024}') for t in range(4)]
    return o + L(f'ds_read2st64_b32 {a(LKL,2)}, {vFL} offset0:0 offset1:4\nds_read2st64_b32 {a(LKL+2,2)}, {vFL} offset0:8 offset1:12')
def k_pub():
    o = [I(f'buffer_store_dwordx4 {a(LK1+4*t,4)}, {vL16}, {sWS}, {sKV[0]} offen offset:{t*1024} sc1', 'KP') for t in range(4)]
    return o + L(f'buffer_store_dwordx4 {a(LKL,4)}, {vL16}, {sWS}, {sKV[1]} offen sc1', 'KP')
def v_reads():
    return [I(f'ds_read_b64_tr_b16 {a(LV+8*t+4*j+2*q,2)}, {vFV} offset:{t*1024 + (16*j+8*q)*16}') for t in range(4) for j in range(2) for q in range(2)]
def v_pub():
    o = []
    for f in range(8):
        so, im = (sKV[1], 1024+768*f) if f < 4 else (sKV[2], 768*(f-4))
        o += L(f'buffer_store_dwordx4 {a(LV+4*f,4)}, {vPV}, {sWS}, {so} offen offset:{im} sc1', 'VP')
    return o
def k_halo():
    o = []
    for d, s_ in ((0, sH1), (1, sH2)):
        ts = (3, 2, 1, 0)
        o += L(f'buffer_load_dwordx4 {a(HKL[d],4)}, {vL16}, {s_}, {sHB[d][1]} offen sc1')
        for t in ts: o += L(f'buffer_load_dwordx4 {a(HK1[d]+4*t,4)}, {vL16}, {s_}, {sHB[d][0]} offen offset:{t*1024} sc1')
    return o
def v_halo():
    o = []
    for d, s_ in ((0, sH1), (1, sH2)):
        for t in (3, 2, 1, 0):
            for f in (2*t, 2*t+1):
                so, im = (sHB[d][1], 1024+768*f) if f < 4 else (sHB[d][2], 768*(f-4))
                o += L(f'buffer_load_dwordx4 {a(HV[d]+4*f,4)}, {vPV}, {s_}, {so} offen offset:{im} sc1')
    return o

def poll_issue(reg, addr): return L(f'buffer_load_dwordx2 {v(reg,2)}, {addr}, {sWS}, 0 offen sc1')
def poll_check(reg, addr, name):
    S, R = newlabel(name + 's'), newlabel(name + 'r')
    Lp = newlabel(name + 'l')
    OOL.extend(L(f'''{S}:
    s_mov_b32 {sSPIN}, {SPIN_MAX}
    {Lp}:
    buffer_load_dwordx2 {v(reg,2)}, {addr}, {sWS}, 0 offen sc1
    s_sub_u32 {sSPIN}, {sSPIN}, 1
    s_cmp_eq_u32 {sSPIN}, 0
    s_waitcnt vmcnt(0)
    s_cbranch_scc1 {R}
    v_cmp_ne_u64 vcc, {v(reg,2)}, {v(TAGV,2)}
    s_cbranch_vccnz {Lp}
    s_branch {R}'''))
    return L(f'v_cmp_ne_u64 vcc, {v(reg,2)}, {v(TAGV,2)}\ns_cbranch_vccnz {S}\n{R}:')

def atomic_groups(lst):
    return lst

def phase1():
    if cfg.early_vq:
        stream = list(range(0, 9)) + list(range(10, 18)) + list(range(19, 27))
        WSLOT[9] = NR; WSLOT[18] = NR + 1
        nr = NR
    else:
        stream = list(range(27)); nr = NR + 2
    for s_, j in enumerate(stream): WSLOT[j] = s_ % nr
    def adv(j): return 2 if (cfg.early_vq and j in (8, 17)) else 1
    e(x_unit(0))
    e(w_unit(0, advance=0 if cfg.early_vq else 1))
    e(srd(sG, 's92', 's93', 1152))
    e(f's_mov_b32 m0, {GW}')
    e(f'buffer_load_dwordx4 {vL16}, {sG}, 0 offen lds\nbuffer_load_dwordx4 {vL16}, {sG}, 0 offen offset:1024 lds', tok='G')
    e(srd(sWS, 's96', 's97', WS_BYTES))
    e(f'buffer_load_dwordx2 {v(TAGV,2)}, {vZERO}, {sWS}, 0 offen sc1', tok='G')
    if cfg.early_vq: e(w_unit(9, advance=0))
    setup_rest()
    late = setup_late()
    nl = 110
    e(late[:nl]) if False else None
    e(late)
    if cfg.early_vq: e(w_unit(18, advance=1))
    e(x_unit(1)); e(w_unit(1))
    stamp(1)
    nxt = 2
    nx = 2
    fill = {j: [] for j in range(28)}
    fill[9] += stampL(3)
    ke = stage_epi(0); ve = stage_epi(1)
    KB = 12
    FB = {}
    FB[9] = ke[:15]; fill[10] += ke[15:35]; fill[11] += ke[35:]
    fill[12] += k_reads() + k_pub()
    fill[13] += gate_epi()
    fill[15] += gfac_reads()
    fill[18] += stampL(4)
    FB[18] = ve[:12]; fill[19] += ve[12:]
    fill[20] += v_reads()
    fill[21] += v_pub()
    fill[cfg.kflag_job] = flag_store(0, 'KP') + fill[cfg.kflag_job]
    fill[cfg.kpoll_job] += poll_issue(POLL, vPA)
    fill[cfg.kchk_job] += poll_check(POLL, vPA, 'k') + k_halo()
    pend = None
    for j in range(27):
        toks = [('W', j)]
        if j < 9: toks.append(('X', j))
        if j == 0: toks.append('G')
        e(WAITVM(*toks)); e(WAITLG('T', 'XR'))
        e('s_barrier')
        if j == 1: stamp(2)
        dma = []
        quota = 2
        if nx < 9: dma += x_unit(nx); nx += 1; quota = 1
        while quota and nxt < len(stream) and (nxt < nr or stream[nxt - nr] <= j - 2) and stream[nxt] <= j + 5:
            dma += w_unit(stream[nxt], adv(stream[nxt])); nxt += 1; quota -= 1
        r0 = w_reads(j, 0); r1 = w_reads(j, 1)
        pre = []
        if j < 9:
            pre = L(f'v_add_u32 {vG}, {sGO}, {vGb}')
            dma += L(f's_add_u32 {sGO}, {sGO}, 128\ns_cmp_eq_u32 {sGO}, 1152\ns_cselect_b32 {sGO}, 0, {sGO}')
            xr = [I(f'ds_read_b128 {a(xf(j, ks, m),4)}, {vXr[ks]} offset:{(j % NX)*4096 + m*2048}', 'XR') for ks in range(2) for m in range(2)]
            r0 = xr[:2] + r0 + L(f'ds_read_b128 {v(GF,4)}, {vG}') + xr[2:]
            r1 = r1 + L(f'ds_read_b128 {v(GF+4,4)}, {vG} offset:64')
        F = dma + fill[j]
        F = keep_scc(F)
        h = split_half(F)
        e(pre)
        if pend is not None: e(flat(weave(pend, r0, F[:h])))
        else: e(r0); e(flat(F[:h]))
        e(flat(weave(mfmas(j, 0), r1, F[h:] + FB.get(j, []))))
        pend = mfmas(j, 1)
    assert nxt == len(stream) and nx == 9
    qe = [tile_epi(2, m, n) for n in range(5) for m in range(2)]
    for k, m in enumerate(pend):
        e(m)
        if k >= 3: e(qe[k-3])
    for k in range(7, 10): e(qe[k])
    stamp(5)
    e(WAITLG()); e('s_barrier')
    order = (3, 2, 1, 0)
    e(f'ds_read2st64_b32 v[28:29], {vFL} offset0:8 offset1:12', 'QR')
    e(f'ds_read_b128 {a(Q1+12,4)}, {vF1} offset:3072', 'QR')
    e(f'ds_read_b128 {a(Q1+8,4)}, {vF1} offset:2048', 'QR')
    e(f'ds_read2st64_b32 v[26:27], {vFL} offset0:0 offset1:4', 'QR')
    e(f'ds_read_b128 {a(Q1+4,4)}, {vF1} offset:1024', 'QR')
    e(f'ds_read_b128 {a(Q1,4)}, {vF1}', 'QR')
    stamp(6)

class Grp:
    pass
def keep_scc(F): return F
def flat(x): return x
def split_half(F): return (len(F) + 1) // 2

def kfr(t):
    if t >= 0: k1, kl, vv, tt = LK1, LKL, LV, t
    elif t >= -4: k1, kl, vv, tt = HK1[0], HKL[0], HV[0], t + 4
    else: k1, kl, vv, tt = HK1[1], HKL[1], HV[1], t + 8
    return a(k1+4*tt, 4), a(kl + (tt & 2), 2), tt & 1, a(vv+8*tt, 4), a(vv+8*tt+4, 4)
def qk(i, t, S, nobias=False):
    k1, kl, par, _, _ = kfr(t)
    c = v(BIASD, 16) if t == i else (v(BIASF, 16) if t == i - 8 else '0')
    if nobias: c = '0'
    return L(f'''v_mfma_f32_32x32x16_bf16 {v(S,16)}, {k1}, {a(Q1+4*i,4)}, {c}
    v_mfma_f32_32x32x8_bf16 {v(S,16)}, {kl}, {v(QL+4*i+2*par,2)}, {v(S,16)}''')
def pv(i, t, Pb, first):
    _, _, _, v0_, v1_ = kfr(t)
    O = v(OA+16*i, 16)
    return L(f'''v_mfma_f32_32x32x16_bf16 {O}, {v0_}, {v(Pb,4)}, {"0" if first else O}
    v_mfma_f32_32x32x16_bf16 {O}, {v1_}, {v(Pb+4,4)}, {O}''')
def softmax_chunks(S, Pb):
    C = []
    for g in range(8):
        c = L(f'v_exp_f32 {v(S+2*g)}, {v(S+2*g)}\nv_exp_f32 {v(S+2*g+1)}, {v(S+2*g+1)}')
        if g >= 1: c += L(f'v_cvt_pk_bf16_f32 {v(Pb+g-1)}, {v(S+2*g-2)}, {v(S+2*g-1)}')
        C.append(c)
    return C, L(f'v_cvt_pk_bf16_f32 {v(Pb+7)}, {v(S+14)}, {v(S+15)}')

def standin():
    for i in (3, 2, 1, 0):
        e(f'v_cndmask_b32 {v(QL+4*i + 3*(i & 1))}, 0, v{26+i}, {sLOW}')
        e(qk(i, i, OA+16*i, nobias=True))
    for i in (3, 2, 1, 0):
        S = OA + 16*i
        e(f'v_cvt_pk_bf16_f32 {v(S)}, -{v(S)}, 0')
        e(f'v_permlane32_swap_b32 v{26+i}, {v(S)}')
        e(f'v_mov_b32 {v(QL+4*i)}, v{26+i}\nv_mov_b32 {v(QL+4*i+3)}, v{26+i}')

def o_epilogue(i):
    O = OA + 16*i
    t0 = vT[0]
    o = L(f'''v_cndmask_b32 {v(O+8)}, {v(O+8)}, {v(O+10)}, {sODD}
    v_cndmask_b32 {v(O+9)}, {v(O+9)}, {v(O+11)}, {sODD}
    v_pk_add_f32 v[28:29], {v(O,2)}, {v(O+2,2)}
    v_pk_add_f32 v[30:31], {v(O+4,2)}, {v(O+6,2)}
    v_pk_add_f32 v[28:29], v[28:29], {v(O+8,2)}
    v_pk_add_f32 v[28:29], v[28:29], v[30:31]
    v_add_f32 v28, v28, v29
    v_fma_f32 v28, v28, 0, {v(O+12)}
    v_max_f32 v29, {sLO}, v28
    v_min_f32 v29, {sHI}, v29
    v_cmp_neq_f32 vcc, v28, v29
    s_cbranch_vccnz L_fb_{i}
    L_fbret_{i}:
    v_rcp_f32 {t0}, {v(O+12)}
    s_add_u32 {sT0}, {sOM}, {i*65536}
    v_mul_f32 {t0}, {t0}, {v(GFAC+i)}
    s_add_u32 {sT1}, {sOL}, {i*8192}
    v_mov_b32 {vT[1]}, {t0}''')
    for r in range(5): o += L(f'v_pk_mul_f32 {v(O+2*r,2)}, {v(O+2*r,2)}, v[26:27]')
    for r in range(5): o += L(f'v_cvt_pk_bf16_f32 {v(OST+r)}, {v(O+2*r)}, {v(O+2*r+1)}')
    o += L(f'buffer_store_dwordx4 {v(OST,4)}, {vOM}, {sWS}, {sT0} offen sc1', ('O', i))
    o += L(f'buffer_store_dword {v(OST+4)}, {vOL}, {sWS}, {sT1} offen sc1', ('O', i))
    return o

def wo_units():
    init = L(f'''s_and_b32 {sT2}, {sWV}, 1
    s_mul_i32 {sXB}, {sT2}, {288*1152}
    s_lshl_b32 {sT2}, {sCL}, 7
    s_add_u32 {sXB}, {sXB}, {sT2}
    s_mul_i32 {sWM}, {sWV}, {WOW}
    s_and_b32 {sT2}, {sGAM}, 3
    s_mul_i32 {sT2}, {sT2}, 9
    s_lshl_b32 {sXO}, {sT2}, 10
    s_mul_i32 {sWOO}, {sT2}, {8*1152}''')
    U = []
    for i in range(36):
        u = L(f's_add_u32 m0, {sWM}, {sXO}\ns_add_u32 {sD0}, {sXB}, {sWOO}')
        u += L(f'buffer_load_dwordx4 {vWO}, {sWO}, {sD0} offen lds', 'WO')
        u += L(f's_add_u32 {sXO}, {sXO}, 1024\ns_add_u32 {sWOO}, {sWOO}, {8*1152}')
        if i % 9 == 8:
            u += L(f's_cmp_eq_u32 {sXO}, {WOW}\ns_cselect_b32 {sXO}, 0, {sXO}\ns_cselect_b32 {sWOO}, 0, {sWOO}')
        U.append(u)
    return init, U

OFR = [('a', 64), ('a', 100), ('a', 136), ('v', 128), ('v', 164)]
def ofr(sl, k, n=1):
    t, b = OFR[sl]
    return (a if t == 'a' else v)(b + k, n)
def o_flag_addr(sl, reg):
    mt = sMT[sl]
    return L(f'''s_lshr_b32 {sT2}, {mt}, 3
    s_lshl_b32 {sT2}, {sT2}, 2
    s_add_u32 {sT2}, {sT2}, {sWV}
    s_lshl_b32 {sT2}, {sT2}, 11
    s_bfe_u32 {sT3}, {mt}, 0x20001
    s_lshl_b32 {sT3}, {sT3}, 17
    s_add_u32 {sT2}, {sT2}, {sT3}
    s_add_u32 {sT2}, {sT2}, {FL0 + 2*1024*128}
    v_add_u32 {reg}, {sT2}, {vO16}''')
def o_loads(sl):
    mt = sMT[sl]; ws_ = sO5 if sl == 2 else sWS
    o = L(f'''s_lshl_b32 {sA}, {mt}, 15
    s_lshl_b32 {sB_}, {sWV}, 13
    s_add_u32 {sA}, {sA}, {sB_}
    s_add_u32 {sA}, {sA}, {OM0}
    s_add_u32 {sB_}, {sA}, 4096
    s_lshr_b32 {sC}, {mt}, 1
    s_lshl_b32 {sC}, {sC}, 13
    s_lshl_b32 {sD}, {sWV}, 11
    s_add_u32 {sC}, {sC}, {sD}
    s_and_b32 {sD}, {mt}, 1
    s_lshl_b32 {sD}, {sD}, 6
    s_add_u32 {sC}, {sC}, {sD}
    s_add_u32 {sC}, {sC}, {OL0}''')
    ld = [I(f'buffer_load_dwordx4 {ofr(sl,4*s,4)}, {vL16}, {ws_}, {sA if s < 4 else sB_} offen offset:{(s & 3)*1024} sc1') for s in range(8)]
    ld += [I(f'buffer_load_dword {ofr(sl,32+q)}, v10, {ws_}, {sC} offen offset:{q*128} sc1') for q in range(4)]
    return o, ld

def p3_addr():
    t0, t1, t2, t3, t4, t5 = ['v11', 'v12', 'v13', 'v14', 'v15', 'v16']
    return L(f'''v_lshrrev_b32 {t0}, 4, {vLANE}
    v_bfe_u32 {t1}, {vLANE}, 2, 2
    v_and_b32 {t2}, 3, {vLANE}
    v_lshlrev_b32 {t2}, 3, {t2}
    v_add_u32 {t2}, {sWM}, {t2}
    v_lshrrev_b32 {t3}, 1, {t0}
    v_and_b32 {t4}, 1, {t0}
    v_mul_u32_u24 {t5}, 20, {t3}
    v_lshl_add_u32 {t5}, {t4}, 2, {t5}
    v_add_u32 {t5}, {t5}, {t1}
    v_lshl_add_u32 v2, {t5}, 7, {t2}
    v_xor_b32 {t3}, {t3}, {t4}
    v_lshrrev_b32 {t4}, 1, {t1}
    v_lshl_add_u32 {t3}, {t3}, 1, {t4}
    v_lshl_add_u32 v2, {t3}, 5, v2
    v_xor_b32 v3, 32, v2
    v_xor_b32 v4, 64, v2
    v_xor_b32 v5, 96, v2
    v_mul_u32_u24 {t5}, 72, {t0}
    v_add3_u32 {t5}, {t5}, {t1}, 16
    v_lshl_add_u32 v6, {t5}, 7, {t2}
    v_lshl_add_u32 v6, {t4}, 5, v6
    v_xor_b32 v7, 32, v6
    v_xor_b32 v8, 64, v6
    v_xor_b32 v9, 96, v6
    v_and_b32 {t1}, 15, {vLANE}
    v_lshlrev_b32 {t1}, 2, {t1}
    v_lshl_add_u32 v10, {t0}, 9, {t1}''')

def attention():
    lo, hi = (f32(2.0**-64), f32(2.0**64)) if not cfg.force_fb else (f32(2.0**60), f32(2.0**64))
    e(f's_mov_b32 {sLO}, {lo:#x}\ns_mov_b32 {sHI}, {hi:#x}')
    standin()
    stamp(7)
    local = [(i, t) for i in (3, 2, 1, 0) for t in range(i, -1, -1)]
    halo = [(i, t) for i in (3, 2, 1, 0) for t in range(-1, i - 9, -1)]
    steps = local + halo
    n = len(steps); NL = len(local); NB = cfg.NB
    pvit = {}; cnt = {}
    for k in range(n):
        it = k + 1
        if k >= NL: it = max(it, NL + NB)
        while cnt.get(it, 0) >= 2: it += 1
        if k: it = max(it, pvit[k-1])
        while cnt.get(it, 0) >= 2: it += 1
        pvit[k] = it; cnt[it] = cnt.get(it, 0) + 1
    slot = {}; free_at = {s: (0 if s not in (200, 208) else NL) for s in PSL}
    for k in range(n):
        c = [s for s in PSL if free_at[s] <= k]
        assert c, ('no P slot', k)
        slot[k] = c[0]; free_at[c[0]] = pvit[k] + 1
    last = {}
    for k, (i, t) in enumerate(steps): last[i] = pvit[k]
    nit = max(pvit.values()) + 1
    fill = {k: [] for k in range(nit + 4)}
    post = {k: [] for k in range(nit + 4)}
    fill[1] += [WAITLG()] + L('s_barrier')
    fill[cfg.vflag_it] += flag_store(1, 'VP')
    fill[cfg.vpoll_it] += poll_issue(POLL2, vPB)
    post[cfg.vchk_it] += poll_check(POLL2, vPB, 'v')
    vh = v_halo()
    fill[cfg.vchk_it+1] += vh[:8]; fill[cfg.vchk_it+2] += vh[8:]
    winit, WU = wo_units()
    fill[2] += winit
    post[3] += p3_addr()
    w0 = cfg.vchk_it + 3
    for u, x in enumerate(WU): fill[w0 + u // 2] += x
    for i in (3, 2, 1):
        post[last[i] + 1] += o_epilogue(i)
        fill[last[i] + 6] += flag_store(2 + i, ('O', i))
    pe = nit - 7
    fill[pe] += o_flag_addr(0, vPA) + poll_issue(POLL, vPA)
    fill[pe+1] += o_flag_addr(1, vPB) + poll_issue(POLL2, vPB)
    s0, l0 = o_loads(0); s1, l1 = o_loads(1)
    fill[pe+3] += s0
    post[pe+3] += poll_check(POLL, vPA, 'o0')
    fill[pe+4] += l0
    post[pe+4] += s1 + poll_check(POLL2, vPB, 'o1')
    fill[pe+5] += l1
    post[9] += stampL(8); post[NL+NB-1] += stampL(9)
    started = set()
    e(qk(*steps[0], SB))
    for k in range(nit):
        M = []
        if k + 1 < n: M += qk(*steps[k+1], SB + 16*((k+1) & 1))
        for kk in range(n):
            if pvit[kk] == k:
                i, t = steps[kk]
                M += pv(i, t, slot[kk], i not in started); started.add(i)
        C, tail = softmax_chunks(SB + 16*(k & 1), slot[k]) if k < n else ([[] for _ in range(8)], [])
        pos = {}
        for q, m in enumerate(M): pos.setdefault(q * 8 // len(M), []).append(m)
        F = fill[k]; f = 0; nm = 0
        for g in range(8):
            for m in pos.get(g, []):
                e(m); nm += 1
                fw = -(-nm * len(F) // len(M))
                while f < fw: e(F[f]); f += 1
            e(C[g])
        e(F[f:]); e(tail)
        e(post[k])
    for k in range(nit, nit + 4): assert not fill[k] and not post[k], k
    stamp(10)
    e(o_epilogue(0))

WOFR = list(range(0, 64, 4)) + list(range(196, 256, 4)) + list(range(172, 192, 4))
PACC = 32
def p3_mfmas(sl):
    o = []
    for s in range(9):
        for n in range(4):
            d = v(PACC+16*sl+4*n, 4)
            o.append(I(f'v_mfma_f32_16x16x32_bf16 {d}, {a(WOFR[s*4+n],4)}, {ofr(sl,4*s,4)}, {"0" if s == 0 else d}'))
    return o
def red_write(sl): return [I(f'ds_write_b128 v{11+n}, {v(PACC+16*sl+4*n,4)} offset:{sl*4096}', 'R') for n in range(4)]
def red_read(sl): return [I(f'ds_read_b128 {v(PACC+16*sl+4*src,4)}, v{15 + (src >> 1)} offset:{(src & 1)*WOW + sl*4096}') for src in range(4)]
def red_fin(sl):
    b = PACC + 16*sl
    o = L(f'''v_pk_add_f32 {v(b,2)}, {v(b,2)}, {v(b+4,2)}
    v_pk_add_f32 {v(b+2,2)}, {v(b+2,2)}, {v(b+6,2)}
    v_pk_add_f32 {v(b+8,2)}, {v(b+8,2)}, {v(b+12,2)}
    v_pk_add_f32 {v(b+10,2)}, {v(b+10,2)}, {v(b+14,2)}
    v_pk_add_f32 {v(b,2)}, {v(b,2)}, {v(b+8,2)}
    v_pk_add_f32 {v(b+2,2)}, {v(b+2,2)}, {v(b+10,2)}
    s_mul_i32 {sT0}, {sMT[sl]}, {16*1152}
    v_cvt_pk_bf16_f32 {v(b)}, {v(b)}, {v(b+1)}
    s_lshl_b32 {sT1}, {sCL}, 7
    v_cvt_pk_bf16_f32 {v(b+1)}, {v(b+2)}, {v(b+3)}
    s_add_u32 {sT0}, {sT0}, {sT1}
    buffer_store_dwordx2 {v(b,2)}, v17, {sOUT5 if sl == 2 else sOUT}, {sT0} offen''')
    return o

def phase3():
    t0, t1, t2 = vT[0], vT[1], vT[2]
    e(f's_cmp_ge_u32 {sP}, 252\ns_cbranch_scc1 L_nop3')
    ep = L(f'L_nop3:\ns_waitcnt vmcnt(0)\ns_add_u32 {sT0}, {sFL}, {2*1024*128}\nbuffer_store_dwordx2 {v(TAGV,2)}, {vZERO}, {sWS}, {sT0} offen sc1')
    ep += L(f's_cmp_lg_u32 {sP}, 255\ns_cbranch_scc1 L_fin\ns_cmp_lg_u32 {sWV}, 0\ns_cbranch_scc1 L_fin')
    for k in range(4):
        ep += L(f'v_lshlrev_b32 {vPA}, 9, {vLANE}\nv_add_u32 {vPA}, {FL0 + k*64*512}, {vPA}')
        ep += poll_issue(POLL, vPA) + poll_check(POLL, vPA, 'ep')
    ep += L(f'buffer_store_dwordx2 {v(TAGV,2)}, {vZERO}, {sWS}, 0 offen sc1\ns_branch L_fin')
    OOL.extend(ep)
    e(WAITVM('WO'))
    R = []
    for s in range(8):
        for n in range(4):
            for rd in range(2):
                R.append(I(f'ds_read_b64_tr_b16 {a(WOFR[s*4+n]+2*rd,2)}, v{2 + (n ^ (2*(s & 1)))} offset:{(36*s+8*rd)*128}'))
    for n in range(4):
        for rd in range(2):
            R.append(I(f'ds_read_b64_tr_b16 {a(WOFR[32+n]+2*rd,2)}, v{6 + (n ^ (2*rd))} offset:{rd*36*128}'))
    e(R[:14])
    e(o_flag_addr(3, vPA) + poll_issue(POLL, vPA))
    stamp(11)
    e(weave(p3_mfmas(0)[:29], R[14:], []) + p3_mfmas(0)[29:])
    radr = L(f'''v_and_b32 {t0}, 15, {vLANE}
    v_lshrrev_b32 {t1}, 4, {vLANE}
    v_xor_b32 {t2}, {t0}, {t1}
    v_lshlrev_b32 {t2}, 4, {t2}
    v_lshl_add_u32 {t2}, {t0}, 8, {t2}
    v_add_u32 v11, {sWM}, {t2}
    v_xor_b32 v12, 64, v11
    v_xor_b32 v13, 128, v11
    v_xor_b32 v14, 192, v11
    s_lshl_b32 {sT0}, {sWV}, 2
    v_add_u32 {t1}, {sT0}, {t1}
    v_xor_b32 {t2}, {t0}, {t1}
    v_lshlrev_b32 {t2}, 4, {t2}
    v_lshl_add_u32 v15, {t1}, 8, {t2}
    v_add_u32 v16, {2*WOW}, v15
    v_mul_u32_u24 {t1}, 1152, {t1}
    v_lshl_add_u32 v17, {t0}, 3, {t1}''')
    s3, l3 = o_loads(3)
    F1 = s3 + flag_store(2, ('O', 0)) + poll_check(POLL, vPA, 'o3') + l3 + o_flag_addr(2, vPB) + poll_issue(POLL2, vPB) + radr
    e(weave(p3_mfmas(1), [], F1))
    stamp(12)
    s2, l2 = o_loads(2); s4, l4 = o_loads(4)
    F3 = red_write(0) + red_write(1) + s2 + o_flag_addr(4, vPA) + poll_issue(POLL, vPA) + poll_check(POLL2, vPB, 'o2') + l2
    e(weave(p3_mfmas(3), [], F3))
    e(s4 + poll_check(POLL, vPA, 'o4') + l4)
    stamp(13)
    e(weave(p3_mfmas(2), [], red_write(3)))
    e(red_write(2))
    e(WAITLG()); e('s_barrier')
    for sl in (0, 1, 3, 2): e(red_read(sl))
    for sl in (0, 1, 3, 2): e(red_fin(sl))
    stamp(14)
    e(p3_mfmas(4))
    e(red_write(4))
    e(WAITLG()); e('s_barrier')
    e(red_read(4)); e(red_fin(4))
    e('L_fin:')
    if cfg.pad_us:
        e(DRAIN())
        e(f's_add_u32 s100, s100, {cfg.pad_us*100}\nL_pad:\ns_memrealtime s[74:75]\ns_waitcnt lgkmcnt(0)\ns_sub_u32 s74, s74, s100\ns_cmp_lt_i32 s74, 0\ns_cbranch_scc1 L_pad')
    if cfg.stamps:
        e(DRAIN())
        stamp(15)
        e(f's_memrealtime s[74:75]\nv_writelane_b32 v255, s74, 33\ns_getreg_b32 s74, hwreg(HW_REG_XCC_ID)\nv_writelane_b32 v255, s74, 34')
        e(f's_lshl_b32 {sT0}, {sPW}, 8\ns_add_u32 {sT0}, {sT0}, {ST0}\nv_lshlrev_b32 {t0}, 2, {vLANE}\nbuffer_store_dword v255, {t0}, {sWS}, {sT0} offen')
    e('L_end:\ns_endpgm')

def fallback():
    o = []
    S, Pp, K1, KA, V0, QQ, QP, OO, M, T = 32, 48, 56, 60, 128, 136, 140, 144, 62, 142
    save = list(range(32, 64, 4)) + list(range(128, 160, 4))
    for i in range(4):
        o += L(f'L_fb_{i}:\ns_mov_b32 {sFI}, {i}\ns_branch L_fb_save')
    o += L('L_fb_save:\ns_nop 15\ns_nop 7') + [DRAIN()]
    o += L(f's_lshl_b32 {sF0}, {sPW}, 14\ns_add_u32 {sF0}, {sF0}, {SV0}')
    for k, r in enumerate(save):
        o += L(f's_add_u32 {sF1}, {sF0}, {k*1024}\nbuffer_store_dwordx4 {v(r,4)}, {vL16}, {sWS}, {sF1} offen')
    o += [DRAIN()]
    for i in range(4):
        o += L(f's_cmp_lg_u32 {sFI}, {i}\ns_cbranch_scc1 L_fb_q{i}')
        for r in range(4): o += L(f'v_accvgpr_read_b32 {v(QQ+r)}, {a(Q1+4*i+r)}')
        o += L(f'v_cndmask_b32 {v(QP)}, 0, {v(QL+4*i)}, {sLOW}\nL_fb_q{i}:')
    o += L(f'v_mov_b32 {v(QP+1)}, 0\nv_mov_b32 {v(KA+1)}, 0\nv_mov_b32 {v(M)}, 0xff800000')
    for r in range(16): o += L(f'v_mov_b32 {v(OO+r)}, 0')
    for ps in range(2):
        o += L(f's_mov_b32 {sF2}, 0\nL_fb_loop{ps}:')
        o += L(f'''s_lshl_b32 {sF1}, {sRB}, 2
        s_add_u32 {sF1}, {sF1}, {sFI}
        s_cmp_lt_u32 {sF1}, {sF2}
        s_cbranch_scc1 L_fb_end{ps}
        s_sub_u32 {sF1}, {sF1}, {sF2}
        s_lshr_b32 {sT0}, {sF1}, 2
        s_sub_u32 {sT0}, {sRB}, {sT0}
        s_mul_i32 {sT0}, {sT0}, {64*KVW}
        s_sub_u32 {sT0}, {sKV[0]}, {sT0}
        s_and_b32 {sF1}, {sF1}, 3
        s_lshl_b32 {sT1}, {sF1}, 10
        s_add_u32 {sT1}, {sT1}, {sT0}
        buffer_load_dwordx4 {v(K1,4)}, {vL16}, {sWS}, {sT1} offen sc1
        s_lshl_b32 {sT1}, {sF1}, 2
        s_add_u32 {sT1}, {sT1}, {sT0}
        s_add_u32 {sT1}, {sT1}, 4096
        buffer_load_dword {v(KA)}, {vL16}, {sWS}, {sT1} offen sc1
        s_mul_i32 {sT1}, {sF1}, 1536
        s_add_u32 {sT1}, {sT1}, {sT0}
        s_add_u32 {sT1}, {sT1}, 5120
        buffer_load_dwordx4 {v(V0,4)}, {vPV}, {sWS}, {sT1} offen sc1
        buffer_load_dwordx4 {v(V0+4,4)}, {vPV}, {sWS}, {sT1} offen offset:768 sc1
        s_lshl_b32 {sT1}, {sF2}, 5
        v_add_u32 {v(T)}, {sT1}, {vU}
        v_mov_b32 {v(Pp+1)}, 0xff800000
        s_movk_i32 {sT1}, 256''')
        for r in range(16):
            c = 8*(r >> 2) + (r & 3)
            o += L(f'v_subrev_u32 {v(Pp)}, {c}, {v(T)}\nv_cmp_gt_u32 vcc, {sT1}, {v(Pp)}\nv_cndmask_b32 {v(S+r)}, {v(Pp+1)}, {vZERO}, vcc')
        o += L(f'''v_mfma_f32_32x32x16_bf16 {v(S,16)}, {v(K1,4)}, {v(QQ,4)}, {v(S,16)}
        v_mfma_f32_32x32x8_bf16 {v(S,16)}, {v(KA,2)}, {v(QP,2)}, {v(S,16)}''')
        if ps == 0:
            for r in range(16): o += L(f'v_max_f32 {v(M)}, {v(M)}, {v(S+r)}')
        else:
            for r in range(16): o += L(f'v_sub_f32 {v(S+r)}, {v(S+r)}, {v(M)}\nv_exp_f32 {v(S+r)}, {v(S+r)}')
            for r in range(8): o += L(f'v_cvt_pk_bf16_f32 {v(Pp+r)}, {v(S+2*r)}, {v(S+2*r+1)}')
            o += L(f'''v_mfma_f32_32x32x16_bf16 {v(OO,16)}, {v(V0,4)}, {v(Pp,4)}, {v(OO,16)}
            v_mfma_f32_32x32x16_bf16 {v(OO,16)}, {v(V0+4,4)}, {v(Pp+4,4)}, {v(OO,16)}''')
        o += [DRAIN()] + L(f's_nop 15\ns_nop 7\ns_add_u32 {sF2}, {sF2}, 1\ns_cmp_lt_u32 {sF2}, 9\ns_cbranch_scc1 L_fb_loop{ps}\nL_fb_end{ps}:')
        if ps == 0:
            o += L(f'v_mov_b32 {v(M+1)}, {v(M)}\nv_permlane32_swap_b32 {v(M)}, {v(M+1)}\nv_max_f32 {v(M)}, {v(M)}, {v(M+1)}')
    o += L(f'v_cndmask_b32 {v(OO+8)}, {v(OO+8)}, {v(OO+10)}, {sODD}\nv_cndmask_b32 {v(OO+9)}, {v(OO+9)}, {v(OO+11)}, {sODD}')
    for i in range(4):
        o += L(f's_cmp_lg_u32 {sFI}, {i}\ns_cbranch_scc1 L_fb_o{i}')
        for r in range(16): o += L(f'v_mov_b32 {v(OA+16*i+r)}, {v(OO+r)}')
        o += L(f'L_fb_o{i}:')
    for k, r in enumerate(save):
        o += L(f's_add_u32 {sF1}, {sF0}, {k*1024}\nbuffer_load_dwordx4 {v(r,4)}, {vL16}, {sWS}, {sF1} offen sc1')
    o += [DRAIN()]
    for i in range(3): o += L(f's_cmp_eq_u32 {sFI}, {i}\ns_cbranch_scc1 L_fbret_{i}')
    o += L('s_branch L_fbret_3')
    return o

HEADER = open('cdna_kernels/' + NAME + '.s.ref').read().split('; Override')[0]
def wrap(body):
    return HEADER + f'''; @launch grid=(256,1,1) block=(256,1,1) lds={LDS_BYTES}
.amdgcn_target "amdgcn-amd-amdhsa--gfx950"
.text
.globl {NAME}_kernel
.p2align 8
.type {NAME}_kernel,@function
{NAME}_kernel:
{body}
L_code_end:
.set CODE_PF_MAX, L_end - {NAME}_kernel - 1024
.section .rodata,"a"
.p2align 6
.amdhsa_kernel {NAME}_kernel
  .amdhsa_next_free_vgpr 512
  .amdhsa_next_free_sgpr 102
  .amdhsa_accum_offset 256
  .amdhsa_group_segment_fixed_size 0
  .amdhsa_kernarg_size 80
  .amdhsa_user_sgpr_count 2
  .amdhsa_user_sgpr_kernarg_segment_ptr 1
  .amdhsa_system_sgpr_workgroup_id_x 1
  .amdhsa_float_denorm_mode_32 3
.end_amdhsa_kernel
'''
def sizes_of(src):
    open('_g.s', 'w').write(src)
    r = subprocess.run(['clang', '-x', 'assembler', '-target', 'amdgcn-amd-amdhsa', '-mcpu=gfx950', '-c', '_g.s', '-o', '_g.o'], capture_output=True, text=True)
    if r.returncode: print(r.stderr[:3000]); raise SystemExit(1)
    d = subprocess.run(['llvm-objdump', '-d', '--mcpu=gfx950', '_g.o'], capture_output=True, text=True).stdout
    return [4*len(m.group(1).split()) for m in re.finditer(r'// [0-9A-F]{12}: ((?:[0-9A-F]{8} ?)+)', d)]

def build():
    prologue(); phase1(); attention(); phase3()
    out = finalize(P) + finalize(OOL) + finalize(fallback())
    if cfg.align:
        sz = sizes_of(wrap(text_of(out)))
        miss = align8(out, sz)
        sz = sizes_of(wrap(text_of(out)))
        print(f'instrs {len(sz)} bytes {sum(sz)} misaligned-left {miss} nops {sum(1 for i in out if i.kind == "nop")}', file=sys.stderr)
    return wrap(text_of(out))

if __name__ == '__main__':
    outp = sys.argv[1]
    for kv in sys.argv[2:]:
        k, val = kv.split('=')
        assert hasattr(cfg, k), k
        setattr(cfg, k, int(val))
    open(outp, 'w').write(build())
```
